```python
import torch

def _softmax(x, axis=-1):
    return torch.softmax(x, dim=axis)
def _gelu(x):
    return torch.nn.functional.gelu(x, approximate="tanh")
def _silu(x):
    return torch.nn.functional.silu(x)
def _sigmoid(x):
    return torch.sigmoid(x)
def _layernorm(x, axis=-1, eps=1e-5):
    m = x.mean(dim=axis, keepdim=True)
    v = x.var(dim=axis, keepdim=True, unbiased=False)
    return (x - m) / torch.sqrt(v + eps)
def _scatter_add(tgt, idx, src, axis=0):
    return tgt.clone().index_add_(axis, idx, src)
def _segment_sum(src, seg, n):
    out = torch.zeros((n,) + src.shape[1:], dtype=src.dtype)
    return out.index_add_(0, seg, src)
def _pad(x, pw):
    flat = tuple(v for pair in reversed(pw) for v in pair)
    return torch.nn.functional.pad(x, flat)

kernel_name = 'gated_mix__sliding_block_cached__dense_activation_silu__decode'

def setup_inputs():

    _w = (lambda a: (lambda t: t.to(torch.bfloat16) if t.is_floating_point() else t)(torch.as_tensor(a)))
    def _A_setup():
        B, Sq, D = 2, 1, 640
        Hq, Hkv, Sk, Dh = 32, 32, 8192, 128
        assert Hq % Hkv == 0, (Hq, Hkv)
        return {
            "x": _w((lambda *s: torch.randn(*s, dtype=torch.bfloat16) * 0.05)(B, Sq, D)),
            "k_cache": _w((lambda *s: torch.randn(*s, dtype=torch.bfloat16) * 6.4)(B, Hkv, Sk, Dh)),
            "v_cache": _w((lambda *s: torch.randn(*s, dtype=torch.bfloat16) * 0.1)(B, Hkv, Sk, Dh)),
            "wq": _w((lambda *s: torch.randn(*s, dtype=torch.bfloat16) * 6.4)(D, Hq * Dh) * (D ** -0.5)),
            "wo": _w((lambda *s: torch.randn(*s, dtype=torch.bfloat16) * 0.1)(Hq * Dh, D) * ((Hq * Dh) ** -0.5)),
        }
    _A_in = _A_setup()

    def _B_setup():
        B, S, D, F = 2, 1, 640, 1728
        return {
            "x": _w((lambda *s: torch.randn(*s, dtype=torch.bfloat16) * 0.05)(B, S, D)),
            "w1": _w((lambda *s: torch.randn(*s, dtype=torch.bfloat16) * 3.2)(D, F) * (D ** -0.5)),
            "w2": _w((lambda *s: torch.randn(*s, dtype=torch.bfloat16) * 0.05)(F, D) * (F ** -0.5)),
        }
    _B_in = _B_setup()

    return {
        "A_x": _A_in["x"],
        "A_k_cache": _A_in["k_cache"],
        "A_v_cache": _A_in["v_cache"],
        "A_wq": _A_in["wq"],
        "A_wo": _A_in["wo"],
        "B_x": _B_in["x"],
        "B_w1": _B_in["w1"],
        "B_w2": _B_in["w2"],
        "gate_w": _w((lambda *s: torch.randn(*s, dtype=torch.bfloat16) * 0.05)(640) * 16.0),
    }

def reference(A_x, A_k_cache, A_v_cache, A_wq, A_wo, B_x, B_w1, B_w2, gate_w):
    def _A_ref(x, k_cache, v_cache, wq, wo):
        B, Sq, D = x.shape
        Hq, Dh = 32, 128
        Hkv, Sk = k_cache.shape[1], k_cache.shape[2]
        W = min(4096, max(256, Sk // 4))
        rep = Hq // Hkv
        q = (lambda x, *d: x.permute(*d))((x @ wq).reshape(B, Sq, Hq, Dh), 0, 2, 1, 3)
        k = (lambda x, n, axis: torch.repeat_interleave(x, n, dim=axis))(k_cache[:, :, Sk - W:, :], rep, axis=1)
        v = (lambda x, n, axis: torch.repeat_interleave(x, n, dim=axis))(v_cache[:, :, Sk - W:, :], rep, axis=1)
        scores = torch.einsum("bhqd,bhkd->bhqk", q, k) * (Dh ** -0.5)
        p = _softmax(scores, axis=-1)
        o = torch.einsum("bhqk,bhkd->bhqd", p, v)
        return (lambda x, *d: x.permute(*d))(o, 0, 2, 1, 3).reshape(B, Sq, Hq * Dh) @ wo

    def _B_ref(x, w1, w2):
        h = torch.einsum("bsd,df->bsf", x, w1)
        h = _silu(h)
        out = torch.einsum("bsf,fd->bsd", h, w2)
        return out

    x = A_x
    g = _sigmoid((x * gate_w).sum(-1, keepdims=True))
    a = _A_ref(x, A_k_cache, A_v_cache, A_wq, A_wo)
    b = _B_ref(x, B_w1, B_w2)
    return g * a + (1 - g) * b
```

```python
import argparse, sys

ap = argparse.ArgumentParser()
ap.add_argument("-o", default="kernel.s")
ap.add_argument("--prof", type=int, default=0)
ap.add_argument("--kvpol", default="nt")
ap.add_argument("--wpol", default="nt")
ap.add_argument("--dump", type=int, default=0)
ap.add_argument("--sleep", type=int, default=1)
ap.add_argument("--dper", type=int, default=2)
ap.add_argument("--kfirst", type=int, default=7)
ap.add_argument("--r2last", type=int, default=1)
ap.add_argument("--r2by", default="B")
ap.add_argument("--nda", type=int, default=0)
ap.add_argument("--codepf", type=int, default=0)
ap.add_argument("--codepf_wave", type=int, default=4)
ap.add_argument("--mlwave", type=int, default=0)
ap.add_argument("--depth", type=int, default=1)
ap.add_argument("--sleep1", type=int, default=4)
ap.add_argument("--mask", type=int, default=0)
ap.add_argument("--prio", type=int, default=1)
ap.add_argument("--tlbwarm", type=int, default=0)
ap.add_argument("--qpol", default="sc1")
ap.add_argument("--mix2", type=int, default=0)
ap.add_argument("--dbgspan", type=int, default=0)
a = ap.parse_args()

NAME = "gated_mix__sliding_block_cached__dense_activation_silu__decode_kernel"
L = []
def e(s): L.append("    " + s)
def lab(s): L.append(s + ":")
def cm(s): L.append("    ; " + s)
KVP = (" " + a.kvpol) if a.kvpol else ""
WP = (" " + a.wpol) if a.wpol else ""

WS_EPOCH = 0
WS_QH = 4096
QH_RB = 768
WS_ATT = WS_QH + 32 * 8 * 2 * QH_RB
WS_FFN = WS_ATT + 2 * 40 * 128 * 64
WS_ML = WS_FFN + 2 * 40 * 128 * 64
WS_END = WS_ML + 2 * 128 * 16
WS_PROF = 4 << 20
WS_DUMP = 8 << 20
WS_SIZE = 16 << 20

LDS_P = 0
LDS_O = LDS_P + 4 * 1536
O_STRIDE = 272
LDS_Q = LDS_O + 16 * O_STRIDE
LDS_H = LDS_Q + 256
LDS_M = LDS_H + 32
LDS_L = LDS_M + 32
LDS_G = LDS_L + 32
LDS_CNT = LDS_G + 16
LDS_CNT2 = LDS_G + 4
LDS_NONCE = LDS_G + 32
LDS_RED = LDS_G + 48
LDS_W2 = (LDS_RED + 512 + 255) // 256 * 256
LDS_WO = LDS_W2 + 20480
LDS_END = LDS_WO + 3 * 40960
LDS_SIZE = (LDS_END + 255) // 256 * 256

sWG = "s2"
S_K, S_V, S_WQ, S_WO, S_W1, S_W2, S_WS, S_OUT = [f"s[{i}:{i+3}]" for i in range(40, 72, 4)]
def srd(n): return {"K": 40, "V": 44, "WQ": 48, "WO": 52, "W1": 56, "W2": 60, "WS": 64, "OUT": 68}[n]
sW, sH, sR, sB, sJ, sP = "s3", "s4", "s5", "s6", "s7", "s8"
sNonce = "s9"
sKO = [f"s{72+i}" for i in range(4)]
sSel = [f"s{76+i}" for i in range(4)]
sPLo, sPHi = "s80", "s81"
sT = [f"s{82+i}" for i in range(10)]
sOOB = "s92"
sIsRed = "s93"
sCnt = "s94"
sWOoff = "s95"
sExec = "s[96:97]"
sChk0, sChk1 = "s98", "s99"
sLdsW = "s10"
sC = "s11"

vLane, vL4, vKV = "v0", "v1", "v2"
vTR = [f"v{3+i}" for i in range(5)]
vDM = [f"v{8+i}" for i in range(5)]
vNonce, vT0, vT1 = "v13", "v14", "v15"
K0, V0, WO0, W20 = 16, 80, 144, 224
vQ = 234
vAcc = 238
vP01, vP23 = "v246", "v247"
vPT = 64
vHop = 250
vW2A = 8
def v(i): return f"v{i}"
def vr(i, n): return f"v[{i}:{i+n-1}]"

PROF_SLOTS = 32
prof_n = [0]
def stamp(name):
    if not a.prof: return
    if a.prof == 2 and name not in ("entry", "O barrier", "end"): return
    if name in ("poll addr", "poll issued", "poll 1st ret", "poll 1 issued", "A kernarg", "B kernarg"): return
    i = prof_n[0]; prof_n[0] += 1
    assert i < PROF_SLOTS
    cm(f"stamp {i}: {name}")
    e("s_memrealtime s[100:101]")
    e("s_waitcnt lgkmcnt(0)")
    e(f"v_writelane_b32 v255, s100, {i}")
    PROF_NAMES.append(name)
PROF_NAMES = []

def stampval(name, sreg):
    if a.prof != 1: return
    i = prof_n[0]; prof_n[0] += 1
    assert i < PROF_SLOTS
    e(f"v_writelane_b32 v255, {sreg}, {i}")
    PROF_NAMES.append("#" + name)

def nop(n):
    while n > 0:
        k = min(n, 16); e(f"s_nop {k-1}"); n -= k

def tag4(regs):
    for k in range(4):
        e(f"v_perm_b32 {regs[k]}, {regs[k]}, {vNonce}, {sSel[k]}")

def check4(base, tmp0, tmp1, dst):
    e(f"v_perm_b32 {tmp0}, {v(base+1)}, {v(base)}, {sChk0}")
    e(f"v_perm_b32 {tmp1}, {v(base+3)}, {v(base+2)}, {sChk0}")
    e(f"v_perm_b32 {tmp0}, {tmp1}, {tmp0}, {sChk1}")
    e(f"v_cmp_ne_u32 {dst}, {tmp0}, {vNonce}")

L.append(f"; @launch grid=(256,1,1) block=(512,1,1) lds={LDS_SIZE}")
L.append('.amdgcn_target "amdgcn-amd-amdhsa--gfx950"')
L += [".text", f".globl {NAME}", ".p2align 8", f".type {NAME},@function", f"{NAME}:"]

PQ, PH = V0, V0 + 20
PACC = V0 + 40
PG = WO0
W2D = 238
sDMA = ["s36", "s37", sT[4], sT[5]]
sW2g, sW2l = sT[6], sT[9]
def mk_srd(name, ptr, size):
    d = srd(name)
    e(f"s_mov_b32 s{d}, s{ptr}")
    e(f"s_and_b32 s{d+1}, s{ptr+1}, 0xffff")
    e(f"s_mov_b32 s{d+2}, {size}")
    e(f"s_mov_b32 s{d+3}, 0x20000")
def k_load(t):
    e(f"buffer_load_dwordx4 {vr(K0+4*t,4)}, {vKV}, {S_K}, {sKO[t//4]} offen offset:{(t%4)*1024}{KVP}")
def v_load(t):
    e(f"buffer_load_dwordx4 {vr(V0+4*t,4)}, {vKV}, {S_V}, {sKO[t//4]} offen offset:{(t%4)*1024}{KVP}")
def lane_consts():
    e(f"s_mul_i32 {sLdsW}, {sW}, 5120")
    e(f"s_mul_i32 {sWOoff}, {sH}, 163840")
    e(f"s_add_u32 {sWOoff}, {sWOoff}, {sLdsW}")
    e(f"s_lshr_b32 s15, {sW}, 1")
    e(f"s_and_b32 s15, s15, 1")
    e(f"s_lshl_b32 s15, s15, 3")
    for u in range(5):
        e(f"v_add_u32 {vT0}, {64*u}, {vLane}")
        e(f"v_mul_u32_u24 {vT1}, 205, {vT0}")
        e(f"v_lshrrev_b32 {vT1}, 14, {vT1}")
        e(f"v_mul_u32_u24 {vDM[u]}, 80, {vT1}")
        e(f"v_sub_u32 {vT0}, {vT0}, {vDM[u]}")
        e(f"v_lshl_add_u32 {vDM[u]}, {vT1}, 1, s15")
        e(f"v_xor_b32 {vT0}, {vT0}, {vDM[u]}")
        e(f"v_lshlrev_b32 {vT0}, 4, {vT0}")
        e(f"v_mul_u32_u24 {vT1}, 1280, {vT1}")
        e(f"v_add_u32 {vDM[u]}, {vT0}, {vT1}")
    e(f"s_lshl_b32 s15, {sW}, 2")
    for u in range(3):
        d = v(W2D+u)
        e(f"v_add_u32 {vT0}, {64*u}, {vLane}")
        e(f"v_mul_u32_u24 {vT1}, 205, {vT0}")
        e(f"v_lshrrev_b32 {vT1}, 14, {vT1}")
        e(f"v_mul_u32_u24 {d}, 80, {vT1}")
        e(f"v_sub_u32 {vT0}, {vT0}, {d}")
        e(f"v_lshl_add_u32 {d}, {vT1}, 1, s15")
        e(f"v_and_b32 {d}, 14, {d}")
        e(f"v_xor_b32 {vT0}, {vT0}, {d}")
        e(f"v_lshlrev_b32 {vT0}, 4, {vT0}")
        e(f"v_mul_u32_u24 {vT1}, 1280, {vT1}")
        e(f"v_add_u32 {d}, {vT0}, {vT1}")
def dma_scalars():
    for ks in range(4):
        e(f"s_add_u32 {sDMA[ks]}, {sWOoff}, {ks*40960}")
    e(f"s_mul_i32 {sW2g}, {sP}, {16*1280}")
    e(f"s_mul_i32 {sW2l}, {sW}, 2560")
    e(f"s_add_u32 {sW2g}, {sW2g}, {sW2l}")
def dma_list():
    out = []
    for ks in range(3):
        for u in range(5):
            out.append([f"s_add_u32 m0, {sLdsW}, {LDS_WO + ks*40960 + u*1024}", "s_nop 0",
                        f"buffer_load_dwordx4 {vDM[u]}, {S_WO}, {sDMA[ks]} offen{WP} lds"])
    for u in range(3):
        g = [f"s_add_u32 m0, {sW2l}, {LDS_W2 + u*1024}"]
        g += ["s_mov_b32 exec_hi, 0"] if u == 2 else ["s_nop 0"]
        g += [f"buffer_load_dwordx4 {v(W2D+u)}, {S_W2}, {sW2g} offen{WP} lds"]
        if u == 2: g += ["s_mov_b32 exec_hi, -1"]
        out.append(g)
    return out
def late_srds(skipk=False):
    if not skipk: mk_srd("K", 18, 134217728)
    mk_srd("V", 20, 134217728)
    mk_srd("WO", 24, 4096 * 640 * 2)
    mk_srd("W2", 30, "s13")
    mk_srd("WS", 38, WS_SIZE)
    mk_srd("OUT", 34, 2560)
    if not skipk: e(f"s_load_dword {sNonce}, s[38:39], {WS_EPOCH}")
def consts():
    e(f"s_mov_b32 {sPLo}, 0x05040100")
    e(f"s_mov_b32 {sPHi}, 0x07060302")
    for k in range(4):
        e(f"s_mov_b32 {sSel[k]}, {0x07060500 + k:#x}")
    e(f"s_mov_b32 {sChk0}, 0x0c0c0400")
    e(f"s_mov_b32 {sChk1}, 0x05040100")
    import struct
    cval = struct.unpack("<I", struct.pack("<f", (128 ** -0.5) * 1.4426950408889634))[0]
    e(f"s_mov_b32 {sC}, {cval:#x}")
def tr_addr():
    e(f"v_lshrrev_b32 {vT0}, 4, {vLane}")
    e(f"v_bfe_u32 {vT1}, {vLane}, 2, 2")
    e(f"v_lshl_add_u32 v234, {vT0}, 3, {vT1}")
    e(f"v_mul_u32_u24 v234, 1280, v234")
    e(f"v_and_b32 v235, 1, {vT0}")
    e(f"v_lshlrev_b32 v235, 3, v235")
    e(f"v_lshl_add_u32 v235, {vT1}, 1, v235")
    e(f"v_and_b32 v236, 1, {vLane}")
    e(f"v_lshl_add_u32 v234, v236, 3, v234")
    e(f"v_add_u32 v234, {LDS_WO}, v234")
    e(f"v_bfe_u32 v236, {vLane}, 1, 1")
    e(f"s_mul_i32 {sT[2]}, {sW}, 10")
    for t in range(5):
        e(f"s_add_u32 {sT[3]}, {sT[2]}, {2*t}")
        e(f"v_add_u32 v237, {sT[3]}, v236")
        e(f"v_xor_b32 v237, v237, v235")
        e(f"v_lshl_add_u32 {vTR[t]}, v237, 4, v234")
    e(f"s_mul_i32 {sT[3]}, {sW}, {O_STRIDE}")
    e(f"s_add_u32 {sT[3]}, {sT[3]}, {LDS_O + 8*O_STRIDE}")
    e(f"v_add_u32 v237, {sT[3]}, {vL4}")
    e("v_mov_b32 v236, 0")
    e("ds_write_b32 v237, v236")

def mix_loads(big, t0=0):
    d = dma_list()
    per = a.dper
    di = 0; after = 0
    for t in range(t0, 16):
        big(t)
        if di >= len(d): after += 1
        for _ in range(per):
            if di < len(d):
                for x in d[di]: e(x)
                di += 1
    assert di == len(d)
    return after
def kv_consts():
    e(f"s_lshr_b32 {sT[0]}, s2, 3")
    e(f"s_lshl_b32 {sT[1]}, {sW}, 2")
    e(f"s_add_u32 {sT[1]}, {sT[1]}, {sT[0]}")
    for q in range(4):
        e(f"s_add_u32 {sKO[q]}, {sT[1]}, {q}")
        e(f"s_and_b32 {sKO[q]}, {sKO[q]}, 31")
        e(f"s_lshl_b32 {sKO[q]}, {sKO[q]}, 12")
    e(f"s_lshl_b32 {sT[2]}, {sB}, 5")
    e(f"s_add_u32 {sT[2]}, {sT[2]}, {sH}")
    e(f"s_lshl_b32 {sT[2]}, {sT[2]}, 21")
    e(f"s_lshl_b32 {sT[3]}, {sJ}, 17")
    e(f"s_add_u32 {sT[2]}, {sT[2]}, {sT[3]}")
    e(f"s_add_u32 {sT[2]}, {sT[2]}, {6144*256}")
    e(f"v_lshl_add_u32 {vKV}, {vLane}, 4, {sT[2]}")
def flags():
    e(f"s_and_b32 {sT[2]}, s2, 127")
    e(f"s_cmp_lt_u32 {sT[2]}, 40")
    e(f"s_cselect_b32 {sIsRed}, 1, 0")
    e(f"s_cmp_lt_u32 {sH}, 27")
    e(f"s_cselect_b32 s12, {640*1728*2}, 0")
    e(f"s_cselect_b32 s13, {1728*640*2}, 0")
    e(f"s_cselect_b32 {sOOB}, 0, 0x80000000")

e("s_cmp_ge_u32 s2, 256")
e("s_cbranch_scc1 L_end")
e("s_load_dwordx16 s[16:31], s[0:1], 0")
e("s_load_dwordx8 s[32:39], s[0:1], 64")
if a.prof:
    e("v_mov_b32 v255, 0")
stamp("entry")
if a.dbgspan:
    e("s_memrealtime s[100:101]")
e("v_lshrrev_b32 v1, 6, v0")
e("v_and_b32 v0, 63, v0")
e(f"v_readfirstlane_b32 {sW}, v1")
e(f"s_and_b32 {sH}, s2, 7")
e(f"s_lshr_b32 {sT[0]}, s2, 3")
e(f"s_and_b32 {sT[1]}, {sT[0]}, 3")
e(f"s_lshl_b32 {sT[1]}, {sT[1]}, 3")
e(f"s_or_b32 {sH}, {sH}, {sT[1]}")
e(f"s_lshr_b32 {sR}, s2, 5")
e(f"s_lshr_b32 {sB}, {sR}, 2")
e(f"s_and_b32 {sJ}, {sR}, 3")
e(f"s_lshl_b32 {sP}, {sH}, 2")
e(f"s_or_b32 {sP}, {sP}, {sJ}")
e(f"v_lshlrev_b32 {vL4}, 2, {vLane}")
flags()
e(f"s_cmp_ge_u32 {sW}, 4")
e("s_cbranch_scc1 L_B0")
e(f"s_mul_i32 {sT[5]}, {sR}, 80")
e(f"s_mul_i32 {sT[6]}, {sW}, 20")
e(f"s_add_u32 {sT[5]}, {sT[5]}, {sT[6]}")
e(f"s_lshl_b32 s14, {sT[5]}, 1")
e(f"s_lshl_b32 {sT[7]}, {sT[5]}, 13")
e(f"s_lshl_b32 {sT[8]}, {sH}, 8")
e(f"s_add_u32 {sT[7]}, {sT[7]}, {sT[8]}")
e(f"s_mul_i32 {sT[8]}, {sT[5]}, 3456")
e(f"s_lshl_b32 {sT[9]}, {sH}, 7")
e(f"s_add_u32 {sT[8]}, {sT[8]}, {sT[9]}")
e(f"s_lshl_b32 {sT[0]}, {sW}, 2")
e(f"v_mov_b32 v8, {sT[0]}")
e(f"v_mov_b32 v9, 0")
e(f"ds_write_b32 v8, v9 offset:{LDS_CNT}")
e(f"v_lshlrev_b32 {vT0}, 1, {vLane}")
e("s_waitcnt lgkmcnt(0)")
e("s_barrier")
stamp("A kernarg")
mk_srd("WQ", 22, 640 * 4096 * 2)
for t in range(20):
    e(f"buffer_load_dword {v(PQ+t)}, {vL4}, {S_WQ}, {sT[7]} offen{WP}")
    if t < 19: e(f"s_add_u32 {sT[7]}, {sT[7]}, 8192")
mk_srd("W1", 28, "s12")
for t in range(0, 20, 2):
    e(f"buffer_load_ushort {v(PH+t)}, {vT0}, {S_W1}, {sT[8]} offen{WP}")
    e(f"buffer_load_ushort {v(PH+t+1)}, {vT0}, {S_W1}, {sT[8]} offen offset:3456{WP}")
    if t < 18: e(f"s_add_u32 {sT[8]}, {sT[8]}, 6912")
stamp("A P issued")
late_srds()
e("s_mov_b64 s[12:13], s[16:17]")
XR = {0: list(range(16, 26)), 1: list(range(28, 36)) + [26, 27]}
e(f"s_load_dwordx8 s[16:23], s[12:13], s14")
e(f"s_load_dwordx2 s[24:25], s[12:13], s14 offset:32")
e(f"s_load_dwordx8 s[28:35], s[12:13], s14 offset:1280")
e(f"s_load_dwordx2 s[26:27], s[12:13], s14 offset:1312")
kv_consts()
lane_consts()
consts()
tr_addr()
for i in range(6):
    e(f"v_mov_b32 {v(PACC+i)}, 0")
e("s_waitcnt vmcnt(0) lgkmcnt(0)")
stamp("P data")
e(f"s_add_u32 {sNonce}, {sNonce}, 0x01010101")
e(f"v_mov_b32 {vNonce}, {sNonce}")
for t in range(20):
    half = t & 1; idx = t >> 1
    for b in range(2):
        r = XR[b][idx]
        if half == 0: e(f"s_lshl_b32 {sT[b]}, s{r}, 16")
        else: e(f"s_and_b32 {sT[b]}, s{r}, 0xffff0000")
    e(f"v_lshlrev_b32 {vT0}, 16, {v(PQ+t)}")
    e(f"v_and_b32 {vT1}, 0xffff0000, {v(PQ+t)}")
    e(f"v_lshlrev_b32 {v(PH+t)}, 16, {v(PH+t)}")
    e(f"v_fmac_f32 {v(PACC+0)}, {sT[0]}, {vT0}")
    e(f"v_fmac_f32 {v(PACC+1)}, {sT[0]}, {vT1}")
    e(f"v_fmac_f32 {v(PACC+2)}, {sT[1]}, {vT0}")
    e(f"v_fmac_f32 {v(PACC+3)}, {sT[1]}, {vT1}")
    e(f"v_fmac_f32 {v(PACC+4)}, {sT[0]}, {v(PH+t)}")
    e(f"v_fmac_f32 {v(PACC+5)}, {sT[1]}, {v(PH+t)}")
e(f"s_mul_i32 {sT[0]}, {sW}, 1536")
e(f"s_add_u32 {sT[0]}, {sT[0]}, {LDS_P}")
e(f"v_lshl_add_u32 {vT0}, {vLane}, 3, {sT[0]}")
e(f"v_add_u32 {vT1}, {sT[0]}, {vL4}")
e(f"ds_write_b64 {vT0}, {vr(PACC,2)}")
e(f"ds_write_b64 {vT0}, {vr(PACC+2,2)} offset:768")
e(f"ds_write_b32 {vT1}, {v(PACC+4)} offset:512")
e(f"ds_write_b32 {vT1}, {v(PACC+5)} offset:{768+512}")
e(f"s_lshl_b32 {sT[0]}, {sW}, 2")
e(f"v_mov_b32 {vT0}, {sT[0]}")
e("s_waitcnt lgkmcnt(0)")
e(f"v_mov_b32 {vT1}, 1")
e(f"ds_write_b32 {vT0}, {vT1} offset:{LDS_CNT}")
e(f"ds_write_b32 {vT0}, {vNonce} offset:{LDS_NONCE}")
dma_scalars()
e(f"s_cmp_ge_u32 {sW}, 2")
e("s_cbranch_scc1 L_nopub")
e(f"s_mov_b32 {sCnt}, 0")
e(f"v_mov_b32 {vT0}, 0")
lab("L_aspin")
e(f"ds_read_b128 {vr(PACC,4)}, {vT0} offset:{LDS_CNT}")
e(f"s_add_u32 {sCnt}, {sCnt}, 1")
e("s_waitcnt lgkmcnt(0)")
e(f"v_and_b32 {v(PACC)}, {v(PACC)}, {v(PACC+1)}")
e(f"v_and_b32 {v(PACC+2)}, {v(PACC+2)}, {v(PACC+3)}")
e(f"v_and_b32 {v(PACC)}, {v(PACC)}, {v(PACC+2)}")
e(f"s_cmp_gt_u32 {sCnt}, 100000")
e("s_cbranch_scc1 L_aok")
e(f"v_cmp_ne_u32 vcc, 1, {v(PACC)}")
e("s_cbranch_vccnz L_aspin")
lab("L_aok")
PS = V0
e(f"s_mul_i32 {sT[0]}, {sW}, 768")
e(f"s_add_u32 {sT[0]}, {sT[0]}, {LDS_P}")
e(f"v_lshl_add_u32 {vT0}, {vLane}, 4, {sT[0]}")
for w in range(4):
    e(f"ds_read_b128 {vr(PS+4*w,4)}, {vT0} offset:{w*1536}")
e(f"s_lshl_b32 {sT[1]}, {sH}, 3")
e(f"s_add_u32 {sT[1]}, {sT[1]}, {sR}")
e(f"s_lshl_b32 {sT[1]}, {sT[1]}, 1")
e(f"s_add_u32 {sT[1]}, {sT[1]}, {sW}")
e(f"s_mul_i32 {sT[1]}, {sT[1]}, {QH_RB}")
e(f"s_add_u32 {sT[1]}, {sT[1]}, {WS_QH}")
e(f"v_lshl_add_u32 {vT1}, {vLane}, 4, {sT[1]}")
e("s_waitcnt lgkmcnt(0)")
for (n, off) in ((2, 8), (1, 4)):
    for i in range(n):
        for k in range(4):
            e(f"v_add_f32 {v(PS+4*i+k)}, {v(PS+4*i+k)}, {v(PS+4*i+k+off)}")
tag4([v(PS+k) for k in range(4)])
e("s_mov_b32 exec_hi, 0xffff")
e(f"buffer_store_dwordx4 {vr(PS,4)}, {vT1}, {S_WS}, 0 offen sc1")
e("s_mov_b32 exec_hi, -1")
lab("L_nopub")
stamp("published")
nA = mix_loads(k_load)
stamp("A mix issued")
QD = WO0 + 60
QT = 246
e(f"v_mov_b32 {v(QT)}, 0")
e(f"v_mov_b32 {v(QT+1)}, 0")
e(f"v_mov_b32 {v(QT+6)}, 0")
e(f"s_cmp_eq_u32 {sW}, 0")
e("s_cbranch_scc0 L_noq")
e(f"s_lshl_b32 {sT[0]}, {sH}, 4")
e(f"s_add_u32 {sT[0]}, {sT[0]}, {sB}")
e(f"s_mul_i32 {sT[0]}, {sT[0]}, {QH_RB}")
e(f"s_add_u32 {sT[0]}, {sT[0]}, {WS_QH}")
e(f"v_lshrrev_b32 {vT0}, 5, {vLane}")
e(f"v_mul_u32_u24 {vT0}, {2*QH_RB}, {vT0}")
e(f"v_and_b32 {vT1}, 31, {vLane}")
e(f"v_lshl_add_u32 {vT0}, {vT1}, 4, {vT0}")
e(f"v_add_u32 {v(QT)}, {sT[0]}, {vT0}")
e(f"v_bfe_u32 {vT0}, {vLane}, 2, 3")
e(f"v_mul_u32_u24 {vT0}, {2*QH_RB}, {vT0}")
e(f"v_and_b32 {vT1}, 3, {vLane}")
e(f"v_lshl_add_u32 {vT0}, {vT1}, 4, {vT0}")
e(f"s_lshl_b32 {sT[1]}, {sJ}, 6")
e(f"s_add_u32 {sT[1]}, {sT[1]}, {sT[0]}")
e(f"s_add_u32 {sT[1]}, {sT[1]}, 512")
e(f"v_add_u32 {v(QT+1)}, {sT[1]}, {vT0}")
e(f"s_mov_b32 {sCnt}, 0")
stamp("poll addr")
e(f"v_add_u32 {v(QT+6)}, {8*QH_RB}, {v(QT)}")
lab("L_qpoll")
for u in range(4):
    e(f"buffer_load_dwordx4 {vr(QD+4*u,4)}, {v(QT) if u < 2 else v(QT+6)}, {S_WS}, 0 offen offset:{(u&1)*4*QH_RB} {a.qpol}")
e(f"buffer_load_dwordx4 {vr(QD+16,4)}, {v(QT+1)}, {S_WS}, 0 offen {a.qpol}")

e("s_waitcnt vmcnt(0)")

check4(QD, v(QT+2), v(QT+3), "vcc")
for u in range(1, 5):
    check4(QD+4*u, v(QT+2), v(QT+3), f"s[12:13]")
    nop(1)
    e("s_or_b64 vcc, vcc, s[12:13]")
nop(1)
e("s_cbranch_vccz L_qok")
e(f"s_add_u32 {sCnt}, {sCnt}, 1")
e(f"s_cmp_gt_u32 {sCnt}, 20000")
e("s_cbranch_scc1 L_qok")
e("s_sleep 2")
e("s_branch L_qpoll")
lab("L_qok")
for k in range(20): e(f"v_and_b32 {v(QD+k)}, 0xffffff00, {v(QD+k)}")
for u in range(1, 4):
    for k in range(4):
        e(f"v_add_f32 {v(QD+k)}, {v(QD+k)}, {v(QD+4*u+k)}")
nop(2)
e(f"v_permlane32_swap_b32 {v(QD)}, {v(QD+2)}")
e(f"v_permlane32_swap_b32 {v(QD+1)}, {v(QD+3)}")
nop(1)
e(f"v_add_f32 {v(QD)}, {v(QD)}, {v(QD+2)}")
e(f"v_add_f32 {v(QD+1)}, {v(QD+1)}, {v(QD+3)}")
e(f"v_and_b32 {vT0}, 31, {vLane}")
e(f"v_lshrrev_b32 {vT1}, 5, {vLane}")
e(f"v_lshlrev_b32 {vT1}, 2, {vT1}")
e(f"v_lshl_add_u32 {vT0}, {vT0}, 3, {vT1}")
e(f"v_cvt_pk_bf16_f32 {v(QD)}, {v(QD)}, {v(QD+1)}")
e(f"ds_write_b32 {vT0}, {v(QD)} offset:{LDS_Q}")
HD = QD + 16
for ctl in ("row_ror:4", "row_ror:8"):
    for k in range(4):
        e(f"v_add_f32_dpp {v(HD+k)}, {v(HD+k)}, {v(HD+k)} {ctl} row_mask:0xf bank_mask:0xf")
for k in range(4): e(f"v_mov_b32 {v(QT+2+k)}, {v(HD+k)}")
nop(1)
for k in range(4): e(f"v_permlane16_swap_b32 {v(HD+k)}, {v(QT+2+k)}")
nop(1)
for k in range(4): e(f"v_add_f32 {v(HD+k)}, {v(HD+k)}, {v(QT+2+k)}")
for k in range(4): e(f"v_mul_f32 {v(QT+2+k)}, 0xbfb8aa3b, {v(HD+k)}")
for k in range(4): e(f"v_exp_f32 {v(QT+2+k)}, {v(QT+2+k)}")
for k in range(4): e(f"v_add_f32 {v(QT+2+k)}, 1.0, {v(QT+2+k)}")
for k in range(4): e(f"v_rcp_f32 {v(QT+2+k)}, {v(QT+2+k)}")
for k in range(4): e(f"v_mul_f32 {v(HD+k)}, {v(HD+k)}, {v(QT+2+k)}")
e(f"v_cvt_pk_bf16_f32 {v(HD)}, {v(HD)}, {v(HD+1)}")
e(f"v_cvt_pk_bf16_f32 {v(HD+1)}, {v(HD+2)}, {v(HD+3)}")
e(f"v_and_b32 {vT0}, 3, {vLane}")
e(f"v_lshlrev_b32 {vT0}, 3, {vT0}")
e(f"ds_write_b64 {vT0}, {vr(HD,2)} offset:{LDS_H}")
stamp("q ready")
stampval("q retries", sCnt)
lab("L_noq")
e(f"s_waitcnt vmcnt({nA}) lgkmcnt(0)")
e("s_barrier")
stamp("Ra A")
for t in range(8): v_load(t)
e("s_branch L_J2")
lab("L_B0")
kv_consts()
e("s_waitcnt lgkmcnt(0)")
e("s_barrier")
stamp("B kernarg")
mk_srd("K", 18, 134217728)
e(f"s_cmp_eq_u32 {sW}, 7")
e(f"s_cselect_b32 {sT[0]}, {sIsRed}, 0")
e(f"s_cmp_eq_u32 {sT[0]}, 0")
e("s_cbranch_scc1 L_nogate_ld")
e(f"s_mul_i32 {sT[0]}, {sB}, 1280")
e(f"v_add_u32 {vT1}, {sT[0]}, {vL4}")
for u in range(5):
    e(f"global_load_dword {v(PG+u)}, {vT1}, s[16:17] offset:{u*256}")
for u in range(5):
    e(f"global_load_dword {v(PG+5+u)}, {vL4}, s[32:33] offset:{u*256}")
lab("L_nogate_ld")
if a.codepf:
    e(f"s_cmp_eq_u32 {sW}, {a.codepf_wave}")
    e("s_cbranch_scc0 L_nocodepf")
    e("s_getpc_b64 s[36:37]")
    lab("L_pcref")
    e(f"s_sub_u32 s36, s36, L_pcref-{NAME}")
    e("s_subb_u32 s37, s37, 0")
    e(f"s_lshr_b32 {sT[0]}, s2, 3")
    e(f"s_mul_i32 {sT[1]}, {sT[0]}, CODE_MAGIC")
    e(f"s_lshr_b32 {sT[1]}, {sT[1]}, 16")
    e(f"s_mul_i32 {sT[1]}, {sT[1]}, CODE_CHUNKS")
    e(f"s_sub_u32 {sT[0]}, {sT[0]}, {sT[1]}")
    e(f"s_lshl_b32 {sT[0]}, {sT[0]}, 10")
    e(f"v_lshl_add_u32 {vT0}, {vLane}, 4, {sT[0]}")
    e(f"v_min_u32 {vT0}, CODE_LAST, {vT0}")
    e(f"global_load_dwordx4 {vr(V0+8,4)}, {vT0}, s[36:37]")
    lab("L_nocodepf")
if a.tlbwarm:
    mk_srd("V", 20, 134217728)
    mk_srd("WO", 24, 4096 * 640 * 2)
    mk_srd("W2", 30, "s13")
    mk_srd("WS", 38, WS_SIZE)
    e(f"s_mul_i32 {sT[4]}, {sH}, 163840")
    e(f"s_mul_i32 {sT[5]}, {sP}, {16*1280}")
    e(f"v_mov_b32 v8, 0")
    e(f"v_and_b32 v9, 0xffffffc0, {vKV}")
    e(f"buffer_load_dword v{V0}, v9, {S_V}, {sKO[0]} offen{KVP}")
    e(f"buffer_load_dword v{V0+1}, v8, {S_WO}, {sT[4]} offen{WP}")
    e(f"buffer_load_dword v{V0+2}, v8, {S_W2}, {sT[5]} offen{WP}")
    e(f"buffer_load_dword v{V0+3}, v8, {S_WS}, 0 offen offset:{WS_EPOCH+128} sc1")
for t in range(a.kfirst): k_load(t)
stamp("B first K")
late_srds(skipk=True)
lane_consts()
dma_scalars()
consts()
tr_addr()
mix_loads(k_load, a.kfirst)
stamp("B mix issued")
for t in range(16): v_load(t)
stamp("B V issued")
e(f"s_cmp_eq_u32 {sW}, 7")
e(f"s_cselect_b32 {sT[0]}, {sIsRed}, 0")
e(f"s_cmp_eq_u32 {sT[0]}, 0")
e("s_cbranch_scc1 L_nogate")
e(f"s_waitcnt vmcnt({50 + (4 if a.tlbwarm else 0) + (1 if a.codepf and a.codepf_wave == 7 else 0)})")
e(f"v_dot2_f32_bf16 {vT0}, {v(PG)}, {v(PG+5)}, 0")
for u in range(1, 5):
    e(f"v_dot2_f32_bf16 {vT0}, {v(PG+u)}, {v(PG+5+u)}, {vT0}")
nop(3)
for ctl in ("quad_perm:[1,0,3,2]", "quad_perm:[2,3,0,1]", "row_ror:4", "row_ror:8"):
    e(f"v_add_f32_dpp {vT0}, {vT0}, {vT0} {ctl} row_mask:0xf bank_mask:0xf")
    nop(2)
for sw in ("v_permlane16_swap_b32", "v_permlane32_swap_b32"):
    e(f"v_mov_b32 {vT1}, {vT0}")
    nop(2)
    e(f"{sw} {vT0}, {vT1}")
    nop(1)
    e(f"v_add_f32 {vT0}, {vT0}, {vT1}")
e(f"v_mul_f32 {vT0}, 0xbfb8aa3b, {vT0}")
e(f"v_exp_f32 {vT0}, {vT0}")
nop(1)
e(f"v_add_f32 {vT0}, 1.0, {vT0}")
e(f"v_rcp_f32 {vT0}, {vT0}")
e(f"v_mov_b32 {vT1}, {LDS_G}")
nop(1)
e(f"ds_write_b32 {vT1}, {vT0}")
lab("L_nogate")
e("s_waitcnt vmcnt(16) lgkmcnt(0)")
e("s_barrier")
e(f"v_mov_b32 {vT0}, 0")
e(f"ds_read_b32 {vNonce}, {vT0} offset:{LDS_NONCE}")
stamp("Ra B")
lab("L_J2")
def tr_reads(pairs):
    for (ks, slot) in pairs:
        for t in range(5):
            r = WO0 + (ks*5 + t)*4
            base, off = vTR[t], slot*40960
            if off + 5120 > 65535:
                base, off = v(240+t), 0
            e(f"ds_read_b64_tr_b16 {vr(r,2)}, {base} offset:{off}")
            e(f"ds_read_b64_tr_b16 {vr(r+2,2)}, {base} offset:{off + 5120}")
for t in range(5):
    e(f"v_add_u32 {v(240+t)}, {2*40960}, {vTR[t]}")
tr_reads([(0, 0), (1, 1), (2, 2)])
e(f"v_lshrrev_b32 {vT1}, 4, {vLane}")
e(f"v_mul_u32_u24 {vT1}, 5120, {vT1}")
e(f"v_add_u32 {vT1}, {LDS_WO - LDS_W2}, {vT1}")
for t in range(5):
    e(f"v_sub_u32 {v(240+t)}, {vTR[t]}, {vT1}")
for t in range(5):
    e(f"ds_read_b64_tr_b16 {vr(W20+2*t,2)}, {v(240+t)}")
e(f"v_and_b32 {vT0}, 15, {vLane}")
e(f"v_lshlrev_b32 {vT0}, 4, {vT0}")
e(f"ds_read_b128 {vr(vQ,4)}, {vT0} offset:{LDS_Q}")
e(f"v_lshrrev_b32 {vT1}, 4, {vLane}")
e(f"v_lshlrev_b32 {vT1}, 3, {vT1}")
e(f"ds_read_b64 {vr(vHop,2)}, {vT1} offset:{LDS_H}")
e("s_waitcnt lgkmcnt(0)")
e("s_barrier")
stamp("Rb")
KS = lambda t: K0 + 4*t
S = [KS(t) for t in range(4)]
vM, vLs = "v17", "v18"
def allred(reg, op, tmp, rows=True, quads=False):
    if quads:
        for ctl in ("quad_perm:[1,0,3,2]", "quad_perm:[2,3,0,1]"):
            e(f"{op}_dpp {reg}, {reg}, {reg} {ctl} row_mask:0xf bank_mask:0xf"); nop(2)
    for ctl in ("row_ror:4", "row_ror:8"):
        e(f"{op}_dpp {reg}, {reg}, {reg} {ctl} row_mask:0xf bank_mask:0xf"); nop(2)
    if rows:
        for sw in ("v_permlane16_swap_b32", "v_permlane32_swap_b32"):
            e(f"v_mov_b32 {tmp}, {reg}"); nop(2)
            e(f"{sw} {reg}, {tmp}"); nop(1)
            e(f"{op} {reg}, {reg}, {tmp}")
def qk_softmax():
    cm("QK^T")
    for i in range(4):
        for t in range(16):
            c = "0" if i == 0 else v(KS(t))
            e(f"v_dot2_f32_bf16 {v(KS(t))}, {v(KS(t)+i)}, {v(vQ+i)}, {c}")
    cm("16-lane reduce-scatter of the scores")
    for t in range(8):
        e(f"v_add_f32_dpp {v(KS(t))}, {v(KS(t))}, {v(KS(t))} row_ror:8 row_mask:0xf bank_mask:0x3")
    for t in range(8):
        e(f"v_add_f32_dpp {v(KS(t))}, {v(KS(t+8))}, {v(KS(t+8))} row_ror:8 row_mask:0xf bank_mask:0xc")
    for t in range(4):
        e(f"v_add_f32_dpp {v(KS(t))}, {v(KS(t))}, {v(KS(t))} row_half_mirror row_mask:0xf bank_mask:0x5")
    for t in range(4):
        e(f"v_add_f32_dpp {v(KS(t))}, {v(KS(t+4))}, {v(KS(t+4))} row_half_mirror row_mask:0xf bank_mask:0xa")
    for ctl in ("quad_perm:[1,0,3,2]", "quad_perm:[2,3,0,1]"):
        for t in range(4):
            e(f"v_add_f32_dpp {v(KS(t))}, {v(KS(t))}, {v(KS(t))} {ctl} row_mask:0xf bank_mask:0xf")
    cm("softmax over the wave's 64 keys")
    e(f"v_max3_f32 {vT0}, {v(S[0])}, {v(S[1])}, {v(S[2])}")
    e(f"v_max_f32 {vT0}, {vT0}, {v(S[3])}")
    nop(2)
    allred(vT0, "v_max_f32", vT1)
    e(f"v_mul_f32 {vM}, {sC}, {vT0}")
    for t in range(4):
        e(f"v_fma_f32 {v(S[t])}, {v(S[t])}, {sC}, -{vM}")
    for t in range(4):
        e(f"v_exp_f32 {v(S[t])}, {v(S[t])}")
    nop(1)
    e(f"v_cvt_pk_bf16_f32 {vP01}, {v(S[0])}, {v(S[1])}")
    e(f"v_cvt_pk_bf16_f32 {vP23}, {v(S[2])}, {v(S[3])}")
    e(f"v_add_f32 {vLs}, {v(S[0])}, {v(S[1])}")
    e(f"v_add_f32 {vT0}, {v(S[2])}, {v(S[3])}")
    e(f"v_add_f32 {vLs}, {vLs}, {vT0}")
    nop(2)
    allred(vLs, "v_add_f32", vT1)
    e(f"s_lshl_b32 {sT[0]}, {sW}, 2")
    e(f"v_mov_b32 {vT0}, {sT[0]}")
    e(f"ds_write_b32 {vT0}, {vM} offset:{LDS_M}")
    e(f"ds_write_b32 {vT0}, {vLs} offset:{LDS_L}")
def publish(R0, R4, a0, a4, extra_off, tmpb):
    G0 = tmpb; G4 = tmpb + 4
    for k in range(4):
        e(f"v_mov_b32_dpp {v(G0+k)}, {R0} quad_perm:[{k},{k},{k},{k}] row_mask:0xf bank_mask:0xf")
    for k in range(4):
        e(f"v_mov_b32_dpp {v(G4+k)}, {R4} quad_perm:[{k},{k},{k},{k}] row_mask:0xf bank_mask:0xf")
    tag4([v(G0+k) for k in range(4)])
    tag4([v(G4+k) for k in range(4)])
    e("s_mov_b32 exec_lo, 0x11111111")
    e("s_mov_b32 exec_hi, 0x11111111")
    e(f"buffer_store_dwordx4 {vr(G0,4)}, {a0}, {S_WS}, {extra_off} offen sc1")
    e("s_mov_b32 exec_lo, 0x1111")
    e("s_mov_b32 exec_hi, 0")
    e(f"buffer_store_dwordx4 {vr(G4,4)}, {a4}, {S_WS}, {extra_off} offen sc1")
    e("s_mov_b64 exec, -1")
FD = 32
PUB = 52
sAttOff, sFfnOff = sT[3], sT[2]
def pub_addr():
    e(f"s_mul_i32 {sT[0]}, {sB}, 40")
    e(f"s_mul_i32 {sT[1]}, {sW}, 5")
    e(f"s_add_u32 {sT[0]}, {sT[0]}, {sT[1]}")
    e(f"s_lshl_b32 {sT[0]}, {sT[0]}, 7")
    e(f"s_add_u32 {sT[0]}, {sT[0]}, {sP}")
    e(f"s_lshl_b32 {sT[0]}, {sT[0]}, 6")
    e(f"v_lshrrev_b32 {vT0}, 4, {vLane}")
    e(f"v_lshlrev_b32 {vT0}, 13, {vT0}")
    e(f"v_bfe_u32 {vT1}, {vLane}, 2, 2")
    e(f"v_lshlrev_b32 {vT1}, 4, {vT1}")
    e(f"v_add3_u32 {v(PUB+8)}, {vT0}, {vT1}, {sT[0]}")
    e(f"s_add_u32 {sT[0]}, {sT[0]}, {4*8192}")
    e(f"v_add_u32 {v(PUB+9)}, {sT[0]}, {vT1}")
    e(f"v_add_u32 {v(PUB+10)}, {sOOB}, {v(PUB+8)}")
    e(f"v_add_u32 {v(PUB+11)}, {sOOB}, {v(PUB+9)}")
    e(f"s_mov_b32 {sFfnOff}, {WS_FFN}")
    e(f"s_mov_b32 {sAttOff}, {WS_ATT}")
def ffn_block():
    cm("FFN second projection: 5 tiles, K=16")
    for t in range(5):
        e(f"v_mfma_f32_16x16x16_bf16 {vr(FD+4*t,4)}, {vr(vHop,2)}, {vr(W20+2*t,2)}, 0")
    pub_addr()
    nop(2)
    FR0 = "v19"
    e(f"v_mov_b32 {FR0}, {v(FD)}")
    for g in range(1, 4):
        e(f"v_mov_b32_dpp {FR0}, {v(FD+4*g)} quad_perm:[0,1,2,3] row_mask:{1<<g:#x} bank_mask:0xf")
    nop(2)
    publish(FR0, v(FD+16), v(PUB+10), v(PUB+11), sFfnOff, PUB)
def pv_block(younger, nda=0):
    cm("PV")
    for i in range(8): e(f"v_mov_b32 {v(vAcc+i)}, 0")
    for pr in range(8):
        s0, s1 = 2*pr, 2*pr + 1
        extra = 0
        if nda:
            pos = {1: [12], 2: [11, 13], 3: [10, 12, 14], 4: [10, 11, 13, 14], 5: [9, 10, 12, 13, 14]}[nda]
            extra = sum(1 for p in pos if p >= s1)
        e(f"s_waitcnt vmcnt({15 - s1 + younger + extra})")
        A = V0 + 4*s0; B = V0 + 4*s1
        for i in range(4):
            e(f"v_perm_b32 {v(vPT+2*i)}, {v(B+i)}, {v(A+i)}, {sPLo}")
            e(f"v_perm_b32 {v(vPT+2*i+1)}, {v(B+i)}, {v(A+i)}, {sPHi}")
        P = vP01 if (s0 & 3) == 0 else vP23
        for i in range(8):
            e(f"v_dot2c_f32_bf16_dpp {v(vAcc+i)}, {P}, {v(vPT+i)} row_newbcast:{4*(s0>>2)} row_mask:0xf bank_mask:0xf")
    e(f"s_mul_i32 {sT[0]}, {sW}, {O_STRIDE}")
    e(f"v_and_b32 {vT0}, 15, {vLane}")
    e(f"v_lshrrev_b32 {vT1}, 4, {vLane}")
    for i in range(4): e(f"v_permlane32_swap_b32 {v(vAcc+i)}, {v(vAcc+4+i)}")
    e(f"v_lshlrev_b32 {vT1}, 2, {vT1}")
    for i in range(4): e(f"v_add_f32 {v(vAcc+i)}, {v(vAcc+i)}, {v(vAcc+4+i)}")
    e(f"v_lshl_add_u32 {vT0}, {vT0}, 4, {vT1}")
    e(f"v_add_u32 {vT0}, {sT[0]}, {vT0}")
    e(f"v_permlane16_swap_b32 {v(vAcc)}, {v(vAcc+2)}")
    e(f"v_permlane16_swap_b32 {v(vAcc+1)}, {v(vAcc+3)}")
    nop(1)
    e(f"v_add_f32 {v(vAcc)}, {v(vAcc)}, {v(vAcc+2)}")
    e(f"v_add_f32 {v(vAcc+1)}, {v(vAcc+1)}, {v(vAcc+3)}")
    e(f"v_cvt_pk_bf16_f32 {v(vAcc)}, {v(vAcc)}, {v(vAcc+1)}")
    e(f"ds_write_b32 {vT0}, {v(vAcc)} offset:{LDS_O}")
RF, RM, RA = 80, 88, 96
vRA, vRM, vRW, vRG = "v104", "v105", 106, "v110"
sRedOn = sT[8]
mLo, mHi = "s[20:21]", "s[22:23]"
def red_loads_fm(masked=False):
    if masked: e(f"s_mov_b64 exec, {mLo}")
    e(f"buffer_load_dwordx4 {vr(RF,4)}, {vRA}, {S_WS}, {sFfnOff} offen sc1")
    e(f"buffer_load_dwordx4 {vr(RM,4)}, {vRM}, {S_WS}, 0 offen sc1")
    if masked: e(f"s_mov_b64 exec, {mHi}")
    e(f"buffer_load_dwordx4 {vr(RF+4,4)}, {vRA}, {S_WS}, {sFfnOff} offen offset:1024 sc1")
    e(f"buffer_load_dwordx4 {vr(RM+4,4)}, {vRM}, {S_WS}, 0 offen offset:1024 sc1")
    if masked: e("s_mov_b64 exec, -1")
def red_loads_a(masked=False):
    if masked: e(f"s_mov_b64 exec, {mLo}")
    e(f"buffer_load_dwordx4 {vr(RA,4)}, {vRA}, {S_WS}, {sAttOff} offen sc1")
    if masked: e(f"s_mov_b64 exec, {mHi}")
    e(f"buffer_load_dwordx4 {vr(RA+4,4)}, {vRA}, {S_WS}, {sAttOff} offen offset:1024 sc1")
    if masked: e("s_mov_b64 exec, -1")

def ml_publish(wave, skip):
    e(f"s_cmp_eq_u32 {sW}, {wave}")
    e(f"s_cbranch_scc0 {skip}")
    MLR = 80
    e("v_mov_b32 v96, 0")
    e(f"ds_read_b128 {vr(MLR,4)}, v96 offset:{LDS_M}")
    e(f"ds_read_b128 {vr(MLR+4,4)}, v96 offset:{LDS_M+16}")
    e(f"ds_read_b128 {vr(MLR+8,4)}, v96 offset:{LDS_L}")
    e(f"ds_read_b128 {vr(MLR+12,4)}, v96 offset:{LDS_L+16}")
    e(f"s_lshl_b32 {sT[0]}, {sB}, 7")
    e(f"s_add_u32 {sT[0]}, {sT[0]}, {sP}")
    e(f"s_lshl_b32 {sT[0]}, {sT[0]}, 4")
    e(f"s_add_u32 {sT[0]}, {sT[0]}, {WS_ML}")
    e("s_waitcnt lgkmcnt(0)")
    for r in range(8): e(f"v_sub_f32 {v(MLR+r)}, {v(MLR+r)}, {v(MA)}")
    for r in range(8): e(f"v_exp_f32 {v(MLR+r)}, {v(MLR+r)}")
    e(f"v_mul_f32 v97, {v(MLR)}, {v(MLR+8)}")
    for r in range(1, 8): e(f"v_fmac_f32 v97, {v(MLR+r)}, {v(MLR+8+r)}")
    e(f"v_mov_b32 {v(MLR)}, {v(MA)}")
    e(f"v_mov_b32 {v(MLR+1)}, v97")
    e(f"v_mov_b32 {v(MLR+2)}, {vNonce}")
    e(f"v_mov_b32 {v(MLR+3)}, {vNonce}")
    e(f"v_mov_b32 v96, {sT[0]}")
    e("s_mov_b64 exec, 1")
    e(f"buffer_store_dwordx4 {vr(MLR,4)}, v96, {S_WS}, 0 offen sc1")
    e("s_mov_b64 exec, -1")
    stamp("ML pub")
MA = 16

e(f"s_cmp_ge_u32 {sW}, 4")
e("s_cbranch_scc1 L_B3")
def d3(i):
    hv, u = divmod(i, 5)
    e(f"s_add_u32 m0, {sT[6]}, {LDS_WO + hv*4*5120 + u*1024}")
    e("s_nop 0")
    e(f"buffer_load_dwordx4 {vDM[u]}, {S_WO}, {sT[5] if hv == 0 else sT[7]} offen{WP} lds")
def d3_scalars():
    e(f"s_and_b32 {sT[6]}, {sW}, 3")
    e(f"s_mul_i32 {sT[6]}, {sT[6]}, 5120")
    e(f"s_mul_i32 {sT[5]}, {sH}, 163840")
    e(f"s_add_u32 {sT[5]}, {sT[5]}, {sT[6]}")
    e(f"s_add_u32 {sT[5]}, {sT[5]}, {3*40960}")
    e(f"s_add_u32 {sT[7]}, {sT[5]}, {4*5120}")
if a.r2by == "A":
    d3_scalars()
    for t in range(8, 16): v_load(t)
    for i in range(10): d3(i)
    e("s_waitcnt vmcnt(26)")
else:
    d3_scalars()
    pos = {1: [12], 2: [11, 13], 3: [10, 12, 14], 4: [10, 11, 13, 14], 5: [9, 10, 12, 13, 14], 0: []}[a.nda]
    di = 0
    for t in range(8, 16):
        v_load(t)
        if t in pos:
            d3(di); di += 1
    e(f"s_waitcnt vmcnt({16 + a.nda})")
stamp("A V issued")
qk_softmax()
stamp("A softmax")
ffn_block()
stamp("A ffn pub")
pv_block(12 if a.r2by == "A" else 2, a.nda if a.r2by == "B" else 0)
stamp("A PV done")
if a.prio: e(f"s_setprio {a.prio}")
e("s_branch L_J4")
lab("L_B3")
qk_softmax()
stamp("B softmax")
pv_block(0)
stamp("B PV done")
ffn_block()
stamp("B ffn pub")
if a.r2by == "B":
    d3_scalars()
    for i in range(a.nda, 10): d3(i)
    stamp("B r2 issued")
lab("L_J4")
e(f"v_and_b32 {vT0}, 15, {vLane}")
e(f"v_mul_u32_u24 {vT0}, {O_STRIDE}, {vT0}")
e(f"v_lshrrev_b32 {vT1}, 4, {vLane}")
e(f"v_lshl_add_u32 {vT0}, {vT1}, 4, {vT0}")
e(f"v_and_b32 {vT1}, 1, {vT1}")
e(f"v_lshlrev_b32 {vT1}, 4, {vT1}")
e("v_mov_b32 v8, 0")
e("s_waitcnt lgkmcnt(0)")
e("s_barrier")
stamp("O barrier")
OA = 64
DA = 32
for s_ in range(4):
    e(f"ds_read_b128 {vr(OA+4*s_,4)}, {vT0} offset:{LDS_O + s_*64}")
e(f"ds_read_b128 {vr(MA,4)}, v8 offset:{LDS_M}")
e(f"ds_read_b128 {vr(MA+4,4)}, v8 offset:{LDS_M+16}")
e(f"ds_read_b128 {vr(MA+8,4)}, {vT1} offset:{LDS_M}")
if not a.r2last: tr_reads([(3, 0)])
nl = 7 if a.r2last else 17
for s_ in range(4):
    if s_ == 3:
        ml_publish(a.mlwave, "L_noml")
        lab("L_noml")
    if s_ == 3 and a.r2last:
        assert a.r2by == "B" and a.nda == 0
        e(f"s_cmp_ge_u32 {sW}, 4")
        e("s_cbranch_scc0 L_noDwait")
        e("s_waitcnt vmcnt(0)")
        lab("L_noDwait")
        e("s_barrier")
        stamp("Rc")
        tr_reads([(3, 0)])
        e("s_waitcnt lgkmcnt(0)")
    if s_ < 3: e(f"s_waitcnt lgkmcnt({min(15, nl - 1 - s_)})")
    for t in range(5):
        c = "0" if s_ == 0 else vr(DA+4*t,4)
        e(f"v_mfma_f32_16x16x32_bf16 {vr(DA+4*t,4)}, {vr(OA+4*s_,4)}, {vr(WO0+(s_*5+t)*4,4)}, {c}")
    if s_ == 1:
        e(f"s_waitcnt lgkmcnt({nl - 7})")
        e(f"v_max3_f32 {v(MA)}, {v(MA)}, {v(MA+1)}, {v(MA+2)}")
        e(f"v_max3_f32 {v(MA+3)}, {v(MA+3)}, {v(MA+4)}, {v(MA+5)}")
        e(f"v_max3_f32 {v(MA)}, {v(MA)}, {v(MA+6)}, {v(MA+7)}")
        e(f"v_max_f32 {v(MA)}, {v(MA)}, {v(MA+3)}")
    if s_ == 2:
        for r in range(4): e(f"v_sub_f32 {v(MA+8+r)}, {v(MA+8+r)}, {v(MA)}")
        for r in range(4): e(f"v_exp_f32 {v(MA+8+r)}, {v(MA+8+r)}")
        if not a.r2last: e("s_waitcnt lgkmcnt(0)")
nop(4)
T = [DA+4*t for t in range(5)]
for t in range(5):
    e(f"v_mul_f32 {v(T[t])}, {v(T[t])}, {v(MA+8)}")
for r in range(1, 4):
    for t in range(5):
        e(f"v_fmac_f32 {v(T[t])}, {v(T[t]+r)}, {v(MA+8+r)}")
e(f"v_mov_b32 {v(T[4]+1)}, {v(T[4])}")
e(f"v_permlane32_swap_b32 {v(T[0])}, {v(T[2])}")
e(f"v_permlane32_swap_b32 {v(T[1])}, {v(T[3])}")
e(f"v_permlane16_swap_b32 {v(T[4])}, {v(T[4]+1)}")
e(f"v_add_f32 {v(T[0])}, {v(T[0])}, {v(T[2])}")
e(f"v_add_f32 {v(T[1])}, {v(T[1])}, {v(T[3])}")
e(f"v_add_f32 {v(T[4])}, {v(T[4])}, {v(T[4]+1)}")
nop(1)
e(f"v_permlane16_swap_b32 {v(T[0])}, {v(T[1])}")
nop(1)
e(f"v_add_f32 {v(T[0])}, {v(T[0])}, {v(T[1])}")
nop(2)
publish(v(T[0]), v(T[4]), v(PUB+8), v(PUB+9), sAttOff, PUB)
stamp("att pub")
e(f"s_cmp_eq_u32 {sIsRed}, 0")
e("s_cbranch_scc1 L_fin")
RA, RF, RM = 64, 68, 72
e(f"s_and_b32 {sT[0]}, s2, 127")
e(f"s_mul_i32 {sT[1]}, {sB}, 40")
e(f"s_add_u32 {sT[1]}, {sT[1]}, {sT[0]}")
e(f"s_lshl_b32 {sT[1]}, {sT[1]}, 13")
e(f"s_lshl_b32 {sT[2]}, {sW}, 10")
e(f"s_add_u32 {sT[1]}, {sT[1]}, {sT[2]}")
e(f"v_lshl_add_u32 v76, {vLane}, 4, {sT[1]}")
e(f"s_lshl_b32 {sT[2]}, {sB}, 11")
e(f"s_lshl_b32 {sT[3]}, {sW}, 8")
e(f"s_add_u32 {sT[2]}, {sT[2]}, {sT[3]}")
e(f"s_add_u32 {sT[2]}, {sT[2]}, {WS_ML}")
e(f"v_lshrrev_b32 {vT0}, 2, {vLane}")
e(f"v_lshl_add_u32 v77, {vT0}, 4, {sT[2]}")
e(f"s_mov_b32 {sT[4]}, {WS_ATT}")
e(f"s_mov_b32 {sT[5]}, {WS_FFN}")
e(f"s_lshl_b32 {sT[6]}, {sW}, 4")
e(f"v_add_u32 {vT0}, {sT[6]}, {vT0}")
e(f"s_movk_i32 {sT[7]}, 108")
e(f"v_cmp_gt_u32 s[14:15], {sT[7]}, {vT0}")
e(f"s_mov_b32 {sCnt}, 0")
lab("L_rpoll1")
e(f"buffer_load_dwordx4 {vr(RF,4)}, v76, {S_WS}, {sT[5]} offen sc1")
e(f"buffer_load_dwordx4 {vr(RM,4)}, v77, {S_WS}, 0 offen sc1")
e(f"buffer_load_dwordx4 {vr(RA,4)}, v76, {S_WS}, {sT[4]} offen sc1")
e("s_waitcnt vmcnt(1)")
check4(RF, vT0, vT1, "vcc")
e(f"v_cmp_ne_u32 s[12:13], {v(RM+2)}, {vNonce}")
nop(1)
e("s_and_b64 vcc, vcc, s[14:15]")
e("s_or_b64 vcc, vcc, s[12:13]")
nop(1)
e("s_cbranch_vccz L_rok1")
e(f"s_add_u32 {sCnt}, {sCnt}, 1")
e(f"s_cmp_gt_u32 {sCnt}, 20000")
e("s_cbranch_scc1 L_rok1")
e("s_waitcnt vmcnt(0)")
e(f"s_sleep {a.sleep}")
e("s_branch L_rpoll1")
lab("L_rok1")
e(f"v_mov_b32 {vT0}, {LDS_G}")
e(f"ds_read_b32 v78, {vT0}")
e(f"v_mov_b32 {vT1}, {v(RM)}")
nop(1)
for ctl in ("row_ror:4", "row_ror:8"):
    e(f"v_max_f32_dpp {vT1}, {vT1}, {vT1} {ctl} row_mask:0xf bank_mask:0xf")
    nop(2)
e(f"v_sub_f32 {v(RM)}, {v(RM)}, {vT1}")
e(f"v_exp_f32 {v(RM)}, {v(RM)}")
nop(1)
e(f"v_mul_f32 {v(RM+1)}, {v(RM+1)}, {v(RM)}")
nop(2)
for ctl in ("row_ror:4", "row_ror:8"):
    e(f"v_add_f32_dpp {v(RM+1)}, {v(RM+1)}, {v(RM+1)} {ctl} row_mask:0xf bank_mask:0xf")
    nop(2)
e(f"v_rcp_f32 {v(RM+1)}, {v(RM+1)}")
e("s_waitcnt lgkmcnt(0)")
e(f"v_mul_f32 {v(RM)}, {v(RM)}, v78")
e(f"v_sub_f32 v78, 1.0, v78")
e(f"v_mul_f32 {v(RM)}, {v(RM)}, {v(RM+1)}")
for k in range(4):
    e(f"v_and_b32 {v(RF+k)}, 0xffffff00, {v(RF+k)}")
for k in range(4):
    e(f"v_cndmask_b32 {v(RF+k)}, 0, {v(RF+k)}, s[14:15]")
for k in range(4):
    e(f"v_mul_f32 {v(RF+k)}, v78, {v(RF+k)}")
e(f"s_mov_b32 {sCnt}, 0")
for _ in range(a.depth - 1):
    e(f"buffer_load_dwordx4 {vr(RA,4)}, v76, {S_WS}, {sT[4]} offen sc1")
lab("L_rpoll2")
e(f"s_waitcnt vmcnt({a.depth - 1})")
check4(RA, vT0, vT1, "s[20:21]")
nop(1)
e("s_or_b64 s[12:13], s[20:21], s[20:21]")
e("s_cbranch_scc0 L_rok2")
e(f"s_add_u32 {sCnt}, {sCnt}, 1")
e(f"s_cmp_gt_u32 {sCnt}, 40000")
e("s_cbranch_scc1 L_rok2")
if a.sleep: e(f"s_sleep {a.sleep}")
if a.mask: e("s_mov_b64 exec, s[20:21]")
e(f"buffer_load_dwordx4 {vr(RA,4)}, v76, {S_WS}, {sT[4]} offen sc1")
if a.mask: e("s_mov_b64 exec, -1")
e("s_branch L_rpoll2")
lab("L_rok2")
stamp("polled")
stampval("final retries", sCnt)
for k in range(4):
    e(f"v_and_b32 {v(84+k)}, 0xffffff00, {v(RA+k)}")
for k in range(4):
    e(f"v_fmac_f32 {v(RF+k)}, {v(RM)}, {v(84+k)}")
nop(1)
for ctl in ("row_ror:4", "row_ror:8"):
    for k in range(4):
        e(f"v_add_f32_dpp {v(RF+k)}, {v(RF+k)}, {v(RF+k)} {ctl} row_mask:0xf bank_mask:0xf")
nop(1)
e(f"v_permlane32_swap_b32 {v(RF)}, {v(RF+2)}")
e(f"v_permlane32_swap_b32 {v(RF+1)}, {v(RF+3)}")
nop(1)
e(f"v_add_f32 {v(RF)}, {v(RF)}, {v(RF+2)}")
e(f"v_add_f32 {v(RF+1)}, {v(RF+1)}, {v(RF+3)}")
nop(1)
e(f"v_permlane16_swap_b32 {v(RF)}, {v(RF+1)}")
e(f"v_and_b32 {vT0}, 3, {vLane}")
e(f"v_lshrrev_b32 {vT1}, 4, {vLane}")
e(f"v_lshl_add_u32 {vT0}, {vT0}, 2, {vT1}")
e(f"s_lshl_b32 {sT[0]}, {sW}, 2")
e(f"v_add_f32 {v(RF)}, {v(RF)}, {v(RF+1)}")
e(f"v_lshl_add_u32 {vT0}, {vT0}, 5, {sT[0]}")
e(f"ds_write_b32 {vT0}, {v(RF)} offset:{LDS_RED}")
e("s_waitcnt lgkmcnt(0)")
e("s_barrier")
e(f"s_cmp_eq_u32 {sW}, 0")
e("s_cbranch_scc0 L_fin")
e(f"v_and_b32 {vT0}, 15, {vLane}")
e(f"v_lshlrev_b32 {vT1}, 5, {vT0}")
FS = 80
e(f"ds_read_b128 {vr(FS,4)}, {vT1} offset:{LDS_RED}")
e(f"ds_read_b128 {vr(FS+4,4)}, {vT1} offset:{LDS_RED+16}")
e(f"s_and_b32 {sT[0]}, s2, 127")
e(f"s_lshl_b32 {sT[0]}, {sT[0]}, 5")
e(f"s_mul_i32 {sT[1]}, {sB}, 1280")
e(f"s_add_u32 {sT[0]}, {sT[0]}, {sT[1]}")
e(f"v_lshl_add_u32 {vT0}, {vT0}, 1, {sT[0]}")
e("s_waitcnt lgkmcnt(0)")
for k in range(4): e(f"v_add_f32 {v(FS+k)}, {v(FS+k)}, {v(FS+4+k)}")
e(f"v_add_f32 {v(FS)}, {v(FS)}, {v(FS+1)}")
e(f"v_add_f32 {v(FS+2)}, {v(FS+2)}, {v(FS+3)}")
e(f"v_add_f32 {v(FS)}, {v(FS)}, {v(FS+2)}")
e(f"v_cvt_pk_bf16_f32 {v(FS)}, {v(FS)}, {v(FS)}")
e("s_mov_b32 exec_lo, 0xffff")
e("s_mov_b32 exec_hi, 0")
e(f"buffer_store_short {v(FS)}, {vT0}, {S_OUT}, 0 offen")
e("s_cmp_eq_u32 s2, 0")
e("s_cbranch_scc0 L_noepoch")
e("s_mov_b32 exec_lo, 1")
e(f"v_mov_b32 {vT0}, {WS_EPOCH}")
e(f"buffer_store_dword {vNonce}, {vT0}, {S_WS}, 0 offen")
lab("L_noepoch")
e("s_mov_b64 exec, -1")
lab("L_fin")
stamp("end")
if a.prof:
    e(f"s_lshl_b32 {sT[0]}, s2, 3")
    e(f"s_add_u32 {sT[0]}, {sT[0]}, {sW}")
    e(f"s_lshl_b32 {sT[0]}, {sT[0]}, 7")
    e(f"s_add_u32 {sT[0]}, {sT[0]}, {WS_PROF}")
    e(f"v_add_u32 {vT0}, {sT[0]}, {vL4}")
    e("s_mov_b32 exec_lo, -1")
    e("s_mov_b32 exec_hi, 0")
    e(f"buffer_store_dword v255, {vT0}, {S_WS}, 0 offen")
if a.dbgspan:
    e("s_cmp_ge_u32 s2, 8")
    e("s_cbranch_scc1 L_end")
    e(f"s_cmp_lg_u32 {sW}, 0")
    e("s_cbranch_scc1 L_end")
    e("s_mov_b32 s96, s100")
    e("s_memrealtime s[100:101]")
    e("s_load_dwordx2 s[12:13], s[0:1], 80")
    e("s_waitcnt lgkmcnt(0)")
    e("v_mov_b32 v20, s96")
    e("v_mov_b32 v21, s100")
    e("s_lshl_b32 s96, s2, 3")
    e("v_mov_b32 v22, s96")
    e("s_mov_b32 exec_lo, 1")
    e("s_mov_b32 exec_hi, 0")
    e("global_store_dwordx2 v22, v[20:21], s[12:13]")
lab("L_end")
e("s_endpgm")
lab("L_codeend")


L += ['.section .rodata,"a"', ".p2align 6", f".amdhsa_kernel {NAME}",
      "  .amdhsa_next_free_vgpr 256", "  .amdhsa_next_free_sgpr 102", "  .amdhsa_accum_offset 256",
      "  .amdhsa_group_segment_fixed_size 0", "  .amdhsa_kernarg_size 96", "  .amdhsa_user_sgpr_count 2",
      "  .amdhsa_user_sgpr_kernarg_segment_ptr 1", "  .amdhsa_system_sgpr_workgroup_id_x 1",
      "  .amdhsa_float_denorm_mode_32 3", ".end_amdhsa_kernel"]
text = "\n".join(L) + "\n"
if a.codepf:
    import subprocess, tempfile, os, re
    def subst(t, nbytes):
        chunks = (nbytes + 1023) // 1024
        return (t.replace("CODE_MAGIC", str(0x10000 // chunks + 1)).replace("CODE_CHUNKS", str(0x1000 + chunks) if nbytes == 0 else str(chunks))
                 .replace("CODE_LAST", str(((nbytes - 16) & ~15) if nbytes else 0x12345)))
    with tempfile.TemporaryDirectory() as d:
        src = os.path.join(d, "k.s"); obj = os.path.join(d, "k.o")
        t0 = text.replace("CODE_MAGIC", "0x12345").replace("CODE_CHUNKS", "0x12345").replace("CODE_LAST", "0x12345")
        open(src, "w").write(t0)
        subprocess.run(["clang", "-x", "assembler", "-target", "amdgcn-amd-amdhsa", "-mcpu=gfx950", "-c", src, "-o", obj], check=True)
        nm = subprocess.run(["llvm-objdump", "-d", "--mcpu=gfx950", obj], capture_output=True, text=True).stdout
        last = re.findall(r"// ([0-9A-F]{12}):", nm)[-1]
        nbytes = int(last, 16) + 4
    chunks = (nbytes + 1023) // 1024
    magic = 0x10000 // chunks + 1
    assert all(((i * magic) >> 16) == i // chunks for i in range(32))
    text = text.replace("CODE_MAGIC", f"{magic:#x}").replace("CODE_LAST", f"{(nbytes - 16) & ~15:#x}")
    text = text.replace("CODE_CHUNKS", str(chunks))
open(a.o, "w").write(text)
if a.prof:
    open(a.o + ".stamps", "w").write("\n".join(PROF_NAMES) + "\n")
```

```python
import argparse, sys

ap = argparse.ArgumentParser()
ap.add_argument("-o", default="kernel.s")
ap.add_argument("--prof", type=int, default=0)
ap.add_argument("--kvpol", default="nt")
ap.add_argument("--wpol", default="nt")
ap.add_argument("--dump", type=int, default=0)
ap.add_argument("--sleep", type=int, default=1)
ap.add_argument("--dper", type=int, default=2)
ap.add_argument("--kfirst", type=int, default=7)
ap.add_argument("--r2last", type=int, default=1)
ap.add_argument("--r2by", default="B")
ap.add_argument("--nda", type=int, default=0)
ap.add_argument("--tfix", type=int, default=0)
ap.add_argument("--codepf", type=int, default=0)
ap.add_argument("--codepf_wave", type=int, default=4)
ap.add_argument("--mlwave", type=int, default=0)
ap.add_argument("--depth", type=int, default=1)
ap.add_argument("--sleep1", type=int, default=4)
ap.add_argument("--mask", type=int, default=0)
ap.add_argument("--prio", type=int, default=1)
ap.add_argument("--tlbwarm", type=int, default=0)
ap.add_argument("--qpol", default="sc1")
ap.add_argument("--mix2", type=int, default=0)
ap.add_argument("--dbgspan", type=int, default=0)
a = ap.parse_args()

NAME = "gated_mix__sliding_block_cached__dense_activation_silu__decode_kernel"
L = []
def e(s): L.append("    " + s)
def lab(s): L.append(s + ":")
def cm(s): L.append("    ; " + s)
KVP = (" " + a.kvpol) if a.kvpol else ""
WP = (" " + a.wpol) if a.wpol else ""

WS_EPOCH = 0
WS_QH = 4096
QH_RB = 768
WS_ATT = WS_QH + 32 * 8 * 2 * QH_RB
WS_FFN = WS_ATT + 2 * 40 * 128 * 64
WS_ML = WS_FFN + 2 * 40 * 128 * 64
WS_END = WS_ML + 2 * 128 * 16
WS_PROF = 4 << 20
WS_DUMP = 8 << 20
WS_SIZE = 16 << 20

LDS_P = 0
LDS_O = LDS_P + 4 * 1536
O_STRIDE = 272
LDS_Q = LDS_O + 16 * O_STRIDE
LDS_H = LDS_Q + 256
LDS_M = LDS_H + 32
LDS_L = LDS_M + 32
LDS_G = LDS_L + 32
LDS_CNT = LDS_G + 16
LDS_CNT2 = LDS_G + 4
LDS_NONCE = LDS_G + 32
LDS_RED = LDS_G + 48
LDS_W2 = (LDS_RED + 512 + 255) // 256 * 256
LDS_WO = LDS_W2 + 20480
LDS_END = LDS_WO + 3 * 40960
LDS_SIZE = (LDS_END + 255) // 256 * 256

sWG = "s2"
S_K, S_V, S_WQ, S_WO, S_W1, S_W2, S_WS, S_OUT = [f"s[{i}:{i+3}]" for i in range(40, 72, 4)]
def srd(n): return {"K": 40, "V": 44, "WQ": 48, "WO": 52, "W1": 56, "W2": 60, "WS": 64, "OUT": 68}[n]
sW, sH, sR, sB, sJ, sP = "s3", "s4", "s5", "s6", "s7", "s8"
sNonce = "s9"
sKO = [f"s{72+i}" for i in range(4)]
sSel = [f"s{76+i}" for i in range(4)]
sPLo, sPHi = "s80", "s81"
sT = [f"s{82+i}" for i in range(10)]
sOOB = "s92"
sIsRed = "s93"
sCnt = "s94"
sWOoff = "s95"
sExec = "s[96:97]"
sChk0, sChk1 = "s98", "s99"
sLdsW = "s10"
sC = "s11"

vLane, vL4, vKV = "v0", "v1", "v2"
vTR = [f"v{3+i}" for i in range(5)]
vDM = [f"v{8+i}" for i in range(5)]
vNonce, vT0, vT1 = "v13", "v14", "v15"
K0, V0, WO0, W20 = 16, 80, 144, 224
vQ = 234
vAcc = 238
vP01, vP23 = "v246", "v247"
vPT = 64
vHop = 250
vW2A = 8
def v(i): return f"v{i}"
def vr(i, n): return f"v[{i}:{i+n-1}]"

PROF_SLOTS = 32
prof_n = [0]
def stamp(name):
    if not a.prof: return
    if a.prof == 2 and name not in ("entry", "O barrier", "end"): return
    if name in ("poll addr", "poll issued", "poll 1st ret", "poll 1 issued", "A kernarg", "B kernarg"): return
    i = prof_n[0]; prof_n[0] += 1
    assert i < PROF_SLOTS
    cm(f"stamp {i}: {name}")
    e("s_memrealtime s[100:101]")
    e("s_waitcnt lgkmcnt(0)")
    e(f"v_writelane_b32 v255, s100, {i}")
    PROF_NAMES.append(name)
PROF_NAMES = []

def stampval(name, sreg):
    if a.prof != 1: return
    i = prof_n[0]; prof_n[0] += 1
    assert i < PROF_SLOTS
    e(f"v_writelane_b32 v255, {sreg}, {i}")
    PROF_NAMES.append("#" + name)

def nop(n):
    while n > 0:
        k = min(n, 16); e(f"s_nop {k-1}"); n -= k

def tag4(regs):
    for k in range(4):
        e(f"v_perm_b32 {regs[k]}, {regs[k]}, {vNonce}, {sSel[k]}")

def check4(base, tmp0, tmp1, dst):
    e(f"v_perm_b32 {tmp0}, {v(base+1)}, {v(base)}, {sChk0}")
    e(f"v_perm_b32 {tmp1}, {v(base+3)}, {v(base+2)}, {sChk0}")
    e(f"v_perm_b32 {tmp0}, {tmp1}, {tmp0}, {sChk1}")
    e(f"v_cmp_ne_u32 {dst}, {tmp0}, {vNonce}")

L.append(f"; @launch grid=(256,1,1) block=(512,1,1) lds={LDS_SIZE}")
L.append('.amdgcn_target "amdgcn-amd-amdhsa--gfx950"')
L += [".text", f".globl {NAME}", ".p2align 8", f".type {NAME},@function", f"{NAME}:"]

PQ, PH = V0, V0 + 20
PACC = V0 + 40
PG = WO0
W2D = 238
sDMA = ["s36", "s37", sT[4], sT[5]]
sW2g, sW2l = sT[6], sT[9]
def mk_srd(name, ptr, size):
    d = srd(name)
    e(f"s_mov_b32 s{d}, s{ptr}")
    e(f"s_and_b32 s{d+1}, s{ptr+1}, 0xffff")
    e(f"s_mov_b32 s{d+2}, {size}")
    e(f"s_mov_b32 s{d+3}, 0x20000")
def k_load(t):
    e(f"buffer_load_dwordx4 {vr(K0+4*t,4)}, {vKV}, {S_K}, {sKO[t//4]} offen offset:{(t%4)*1024}{KVP}")
def v_load(t):
    e(f"buffer_load_dwordx4 {vr(V0+4*t,4)}, {vKV}, {S_V}, {sKO[t//4]} offen offset:{(t%4)*1024}{KVP}")
def lane_consts():
    e(f"s_mul_i32 {sLdsW}, {sW}, 5120")
    e(f"s_mul_i32 {sWOoff}, {sH}, 163840")
    e(f"s_add_u32 {sWOoff}, {sWOoff}, {sLdsW}")
    e(f"s_lshr_b32 s15, {sW}, 1")
    e(f"s_and_b32 s15, s15, 1")
    e(f"s_lshl_b32 s15, s15, 3")
    for u in range(5):
        e(f"v_add_u32 {vT0}, {64*u}, {vLane}")
        e(f"v_mul_u32_u24 {vT1}, 205, {vT0}")
        e(f"v_lshrrev_b32 {vT1}, 14, {vT1}")
        e(f"v_mul_u32_u24 {vDM[u]}, 80, {vT1}")
        e(f"v_sub_u32 {vT0}, {vT0}, {vDM[u]}")
        e(f"v_lshl_add_u32 {vDM[u]}, {vT1}, 1, s15")
        e(f"v_xor_b32 {vT0}, {vT0}, {vDM[u]}")
        e(f"v_lshlrev_b32 {vT0}, 4, {vT0}")
        e(f"v_mul_u32_u24 {vT1}, 1280, {vT1}")
        e(f"v_add_u32 {vDM[u]}, {vT0}, {vT1}")
    e(f"s_lshl_b32 s15, {sW}, 2")
    for u in range(3):
        d = v(W2D+u)
        e(f"v_add_u32 {vT0}, {64*u}, {vLane}")
        e(f"v_mul_u32_u24 {vT1}, 205, {vT0}")
        e(f"v_lshrrev_b32 {vT1}, 14, {vT1}")
        e(f"v_mul_u32_u24 {d}, 80, {vT1}")
        e(f"v_sub_u32 {vT0}, {vT0}, {d}")
        e(f"v_lshl_add_u32 {d}, {vT1}, 1, s15")
        e(f"v_and_b32 {d}, 14, {d}")
        e(f"v_xor_b32 {vT0}, {vT0}, {d}")
        e(f"v_lshlrev_b32 {vT0}, 4, {vT0}")
        e(f"v_mul_u32_u24 {vT1}, 1280, {vT1}")
        e(f"v_add_u32 {d}, {vT0}, {vT1}")
def dma_scalars():
    for ks in range(4):
        e(f"s_add_u32 {sDMA[ks]}, {sWOoff}, {ks*40960}")
    e(f"s_mul_i32 {sW2g}, {sP}, {16*1280}")
    e(f"s_mul_i32 {sW2l}, {sW}, 2560")
    e(f"s_add_u32 {sW2g}, {sW2g}, {sW2l}")
def dma_list():
    out = []
    for ks in range(3):
        for u in range(5):
            out.append([f"s_add_u32 m0, {sLdsW}, {LDS_WO + ks*40960 + u*1024}", "s_nop 0",
                        f"buffer_load_dwordx4 {vDM[u]}, {S_WO}, {sDMA[ks]} offen{WP} lds"])
    for u in range(3):
        g = [f"s_add_u32 m0, {sW2l}, {LDS_W2 + u*1024}"]
        g += ["s_mov_b32 exec_hi, 0"] if u == 2 else ["s_nop 0"]
        g += [f"buffer_load_dwordx4 {v(W2D+u)}, {S_W2}, {sW2g} offen{WP} lds"]
        if u == 2: g += ["s_mov_b32 exec_hi, -1"]
        out.append(g)
    return out
def late_srds(skipk=False):
    if not skipk: mk_srd("K", 18, 134217728)
    mk_srd("V", 20, 134217728)
    mk_srd("WO", 24, 4096 * 640 * 2)
    mk_srd("W2", 30, "s13")
    mk_srd("WS", 38, WS_SIZE)
    mk_srd("OUT", 34, 2560)
    if not skipk: e(f"s_load_dword {sNonce}, s[38:39], {WS_EPOCH}")
def consts():
    e(f"s_mov_b32 {sPLo}, 0x05040100")
    e(f"s_mov_b32 {sPHi}, 0x07060302")
    for k in range(4):
        e(f"s_mov_b32 {sSel[k]}, {0x07060500 + k:#x}")
    e(f"s_mov_b32 {sChk0}, 0x0c0c0400")
    e(f"s_mov_b32 {sChk1}, 0x05040100")
    import struct
    cval = struct.unpack("<I", struct.pack("<f", (128 ** -0.5) * 1.4426950408889634))[0]
    e(f"s_mov_b32 {sC}, {cval:#x}")
def tr_addr():
    e(f"v_lshrrev_b32 {vT0}, 4, {vLane}")
    e(f"v_bfe_u32 {vT1}, {vLane}, 2, 2")
    e(f"v_lshl_add_u32 v234, {vT0}, 3, {vT1}")
    e(f"v_mul_u32_u24 v234, 1280, v234")
    e(f"v_and_b32 v235, 1, {vT0}")
    e(f"v_lshlrev_b32 v235, 3, v235")
    e(f"v_lshl_add_u32 v235, {vT1}, 1, v235")
    e(f"v_and_b32 v236, 1, {vLane}")
    e(f"v_lshl_add_u32 v234, v236, 3, v234")
    e(f"v_add_u32 v234, {LDS_WO}, v234")
    e(f"v_bfe_u32 v236, {vLane}, 1, 1")
    e(f"s_mul_i32 {sT[2]}, {sW}, 10")
    for t in range(5):
        e(f"s_add_u32 {sT[3]}, {sT[2]}, {2*t}")
        e(f"v_add_u32 v237, {sT[3]}, v236")
        e(f"v_xor_b32 v237, v237, v235")
        e(f"v_lshl_add_u32 {vTR[t]}, v237, 4, v234")
    e(f"s_mul_i32 {sT[3]}, {sW}, {O_STRIDE}")
    e(f"s_add_u32 {sT[3]}, {sT[3]}, {LDS_O + 8*O_STRIDE}")
    e(f"v_add_u32 v237, {sT[3]}, {vL4}")
    e("v_mov_b32 v236, 0")
    e("ds_write_b32 v237, v236")

def mix_loads(big, t0=0):
    d = dma_list()
    per = a.dper
    di = 0; after = 0
    for t in range(t0, 16):
        big(t)
        if di >= len(d): after += 1
        for _ in range(per):
            if di < len(d):
                for x in d[di]: e(x)
                di += 1
    assert di == len(d)
    return after
def kv_consts():
    e(f"s_lshr_b32 {sT[0]}, s2, 3")
    e(f"s_lshl_b32 {sT[1]}, {sW}, 2")
    e(f"s_add_u32 {sT[1]}, {sT[1]}, {sT[0]}")
    for q in range(4):
        e(f"s_add_u32 {sKO[q]}, {sT[1]}, {q}")
        e(f"s_and_b32 {sKO[q]}, {sKO[q]}, 31")
        e(f"s_lshl_b32 {sKO[q]}, {sKO[q]}, 12")
    e(f"s_lshl_b32 {sT[2]}, {sB}, 5")
    e(f"s_add_u32 {sT[2]}, {sT[2]}, {sH}")
    e(f"s_lshl_b32 {sT[2]}, {sT[2]}, 21")
    e(f"s_lshl_b32 {sT[3]}, {sJ}, 17")
    e(f"s_add_u32 {sT[2]}, {sT[2]}, {sT[3]}")
    e(f"s_add_u32 {sT[2]}, {sT[2]}, {6144*256}")
    e(f"v_lshl_add_u32 {vKV}, {vLane}, 4, {sT[2]}")
def flags():
    e(f"s_and_b32 {sT[2]}, s2, 127")
    e(f"s_cmp_lt_u32 {sT[2]}, 40")
    e(f"s_cselect_b32 {sIsRed}, 1, 0")
    e(f"s_cmp_lt_u32 {sH}, 27")
    e(f"s_cselect_b32 s12, {640*1728*2}, 0")
    e(f"s_cselect_b32 s13, {1728*640*2}, 0")
    e(f"s_cselect_b32 {sOOB}, 0, 0x80000000")

e("s_cmp_ge_u32 s2, 256")
e("s_cbranch_scc1 L_end")
e("s_load_dwordx16 s[16:31], s[0:1], 0")
e("s_load_dwordx8 s[32:39], s[0:1], 64")
if a.prof:
    e("v_mov_b32 v255, 0")
stamp("entry")
if a.dbgspan or a.tfix:
    e("s_memrealtime s[100:101]")
e("v_lshrrev_b32 v1, 6, v0")
e("v_and_b32 v0, 63, v0")
e(f"v_readfirstlane_b32 {sW}, v1")
e(f"s_and_b32 {sH}, s2, 7")
e(f"s_lshr_b32 {sT[0]}, s2, 3")
e(f"s_and_b32 {sT[1]}, {sT[0]}, 3")
e(f"s_lshl_b32 {sT[1]}, {sT[1]}, 3")
e(f"s_or_b32 {sH}, {sH}, {sT[1]}")
e(f"s_lshr_b32 {sR}, s2, 5")
e(f"s_lshr_b32 {sB}, {sR}, 2")
e(f"s_and_b32 {sJ}, {sR}, 3")
e(f"s_lshl_b32 {sP}, {sH}, 2")
e(f"s_or_b32 {sP}, {sP}, {sJ}")
e(f"v_lshlrev_b32 {vL4}, 2, {vLane}")
flags()
e(f"s_cmp_ge_u32 {sW}, 4")
e("s_cbranch_scc1 L_B0")
e(f"s_mul_i32 {sT[5]}, {sR}, 80")
e(f"s_mul_i32 {sT[6]}, {sW}, 20")
e(f"s_add_u32 {sT[5]}, {sT[5]}, {sT[6]}")
e(f"s_lshl_b32 s14, {sT[5]}, 1")
e(f"s_lshl_b32 {sT[7]}, {sT[5]}, 13")
e(f"s_lshl_b32 {sT[8]}, {sH}, 8")
e(f"s_add_u32 {sT[7]}, {sT[7]}, {sT[8]}")
e(f"s_mul_i32 {sT[8]}, {sT[5]}, 3456")
e(f"s_lshl_b32 {sT[9]}, {sH}, 7")
e(f"s_add_u32 {sT[8]}, {sT[8]}, {sT[9]}")
e(f"s_lshl_b32 {sT[0]}, {sW}, 2")
e(f"v_mov_b32 v8, {sT[0]}")
e(f"v_mov_b32 v9, 0")
e(f"ds_write_b32 v8, v9 offset:{LDS_CNT}")
e(f"v_lshlrev_b32 {vT0}, 1, {vLane}")
e("s_waitcnt lgkmcnt(0)")
e("s_barrier")
stamp("A kernarg")
mk_srd("WQ", 22, 640 * 4096 * 2)
for t in range(20):
    e(f"buffer_load_dword {v(PQ+t)}, {vL4}, {S_WQ}, {sT[7]} offen{WP}")
    if t < 19: e(f"s_add_u32 {sT[7]}, {sT[7]}, 8192")
mk_srd("W1", 28, "s12")
for t in range(0, 20, 2):
    e(f"buffer_load_ushort {v(PH+t)}, {vT0}, {S_W1}, {sT[8]} offen{WP}")
    e(f"buffer_load_ushort {v(PH+t+1)}, {vT0}, {S_W1}, {sT[8]} offen offset:3456{WP}")
    if t < 18: e(f"s_add_u32 {sT[8]}, {sT[8]}, 6912")
stamp("A P issued")
late_srds()
e("s_mov_b64 s[12:13], s[16:17]")
XR = {0: list(range(16, 26)), 1: list(range(28, 36)) + [26, 27]}
e(f"s_load_dwordx8 s[16:23], s[12:13], s14")
e(f"s_load_dwordx2 s[24:25], s[12:13], s14 offset:32")
e(f"s_load_dwordx8 s[28:35], s[12:13], s14 offset:1280")
e(f"s_load_dwordx2 s[26:27], s[12:13], s14 offset:1312")
kv_consts()
lane_consts()
consts()
tr_addr()
for i in range(6):
    e(f"v_mov_b32 {v(PACC+i)}, 0")
e("s_waitcnt vmcnt(0) lgkmcnt(0)")
stamp("P data")
e(f"s_add_u32 {sNonce}, {sNonce}, 0x01010101")
e(f"v_mov_b32 {vNonce}, {sNonce}")
for t in range(20):
    half = t & 1; idx = t >> 1
    for b in range(2):
        r = XR[b][idx]
        if half == 0: e(f"s_lshl_b32 {sT[b]}, s{r}, 16")
        else: e(f"s_and_b32 {sT[b]}, s{r}, 0xffff0000")
    e(f"v_lshlrev_b32 {vT0}, 16, {v(PQ+t)}")
    e(f"v_and_b32 {vT1}, 0xffff0000, {v(PQ+t)}")
    e(f"v_lshlrev_b32 {v(PH+t)}, 16, {v(PH+t)}")
    e(f"v_fmac_f32 {v(PACC+0)}, {sT[0]}, {vT0}")
    e(f"v_fmac_f32 {v(PACC+1)}, {sT[0]}, {vT1}")
    e(f"v_fmac_f32 {v(PACC+2)}, {sT[1]}, {vT0}")
    e(f"v_fmac_f32 {v(PACC+3)}, {sT[1]}, {vT1}")
    e(f"v_fmac_f32 {v(PACC+4)}, {sT[0]}, {v(PH+t)}")
    e(f"v_fmac_f32 {v(PACC+5)}, {sT[1]}, {v(PH+t)}")
e(f"s_mul_i32 {sT[0]}, {sW}, 1536")
e(f"s_add_u32 {sT[0]}, {sT[0]}, {LDS_P}")
e(f"v_lshl_add_u32 {vT0}, {vLane}, 3, {sT[0]}")
e(f"v_add_u32 {vT1}, {sT[0]}, {vL4}")
e(f"ds_write_b64 {vT0}, {vr(PACC,2)}")
e(f"ds_write_b64 {vT0}, {vr(PACC+2,2)} offset:768")
e(f"ds_write_b32 {vT1}, {v(PACC+4)} offset:512")
e(f"ds_write_b32 {vT1}, {v(PACC+5)} offset:{768+512}")
e(f"s_lshl_b32 {sT[0]}, {sW}, 2")
e(f"v_mov_b32 {vT0}, {sT[0]}")
e("s_waitcnt lgkmcnt(0)")
e(f"v_mov_b32 {vT1}, 1")
e(f"ds_write_b32 {vT0}, {vT1} offset:{LDS_CNT}")
e(f"ds_write_b32 {vT0}, {vNonce} offset:{LDS_NONCE}")
dma_scalars()
e(f"s_cmp_ge_u32 {sW}, 2")
e("s_cbranch_scc1 L_nopub")
e(f"s_mov_b32 {sCnt}, 0")
e(f"v_mov_b32 {vT0}, 0")
lab("L_aspin")
e(f"ds_read_b128 {vr(PACC,4)}, {vT0} offset:{LDS_CNT}")
e(f"s_add_u32 {sCnt}, {sCnt}, 1")
e("s_waitcnt lgkmcnt(0)")
e(f"v_and_b32 {v(PACC)}, {v(PACC)}, {v(PACC+1)}")
e(f"v_and_b32 {v(PACC+2)}, {v(PACC+2)}, {v(PACC+3)}")
e(f"v_and_b32 {v(PACC)}, {v(PACC)}, {v(PACC+2)}")
e(f"s_cmp_gt_u32 {sCnt}, 100000")
e("s_cbranch_scc1 L_aok")
e(f"v_cmp_ne_u32 vcc, 1, {v(PACC)}")
e("s_cbranch_vccnz L_aspin")
lab("L_aok")
PS = V0
e(f"s_mul_i32 {sT[0]}, {sW}, 768")
e(f"s_add_u32 {sT[0]}, {sT[0]}, {LDS_P}")
e(f"v_lshl_add_u32 {vT0}, {vLane}, 4, {sT[0]}")
for w in range(4):
    e(f"ds_read_b128 {vr(PS+4*w,4)}, {vT0} offset:{w*1536}")
e(f"s_lshl_b32 {sT[1]}, {sH}, 3")
e(f"s_add_u32 {sT[1]}, {sT[1]}, {sR}")
e(f"s_lshl_b32 {sT[1]}, {sT[1]}, 1")
e(f"s_add_u32 {sT[1]}, {sT[1]}, {sW}")
e(f"s_mul_i32 {sT[1]}, {sT[1]}, {QH_RB}")
e(f"s_add_u32 {sT[1]}, {sT[1]}, {WS_QH}")
e(f"v_lshl_add_u32 {vT1}, {vLane}, 4, {sT[1]}")
e("s_waitcnt lgkmcnt(0)")
for (n, off) in ((2, 8), (1, 4)):
    for i in range(n):
        for k in range(4):
            e(f"v_add_f32 {v(PS+4*i+k)}, {v(PS+4*i+k)}, {v(PS+4*i+k+off)}")
tag4([v(PS+k) for k in range(4)])
e("s_mov_b32 exec_hi, 0xffff")
e(f"buffer_store_dwordx4 {vr(PS,4)}, {vT1}, {S_WS}, 0 offen sc1")
e("s_mov_b32 exec_hi, -1")
lab("L_nopub")
stamp("published")
nA = mix_loads(k_load)
stamp("A mix issued")
QD = WO0 + 60
QT = 246
e(f"v_mov_b32 {v(QT)}, 0")
e(f"v_mov_b32 {v(QT+1)}, 0")
e(f"v_mov_b32 {v(QT+6)}, 0")
e(f"s_cmp_eq_u32 {sW}, 0")
e("s_cbranch_scc0 L_noq")
e(f"s_lshl_b32 {sT[0]}, {sH}, 4")
e(f"s_add_u32 {sT[0]}, {sT[0]}, {sB}")
e(f"s_mul_i32 {sT[0]}, {sT[0]}, {QH_RB}")
e(f"s_add_u32 {sT[0]}, {sT[0]}, {WS_QH}")
e(f"v_lshrrev_b32 {vT0}, 5, {vLane}")
e(f"v_mul_u32_u24 {vT0}, {2*QH_RB}, {vT0}")
e(f"v_and_b32 {vT1}, 31, {vLane}")
e(f"v_lshl_add_u32 {vT0}, {vT1}, 4, {vT0}")
e(f"v_add_u32 {v(QT)}, {sT[0]}, {vT0}")
e(f"v_bfe_u32 {vT0}, {vLane}, 2, 3")
e(f"v_mul_u32_u24 {vT0}, {2*QH_RB}, {vT0}")
e(f"v_and_b32 {vT1}, 3, {vLane}")
e(f"v_lshl_add_u32 {vT0}, {vT1}, 4, {vT0}")
e(f"s_lshl_b32 {sT[1]}, {sJ}, 6")
e(f"s_add_u32 {sT[1]}, {sT[1]}, {sT[0]}")
e(f"s_add_u32 {sT[1]}, {sT[1]}, 512")
e(f"v_add_u32 {v(QT+1)}, {sT[1]}, {vT0}")
e(f"s_mov_b32 {sCnt}, 0")
stamp("poll addr")
e(f"v_add_u32 {v(QT+6)}, {8*QH_RB}, {v(QT)}")
lab("L_qpoll")
for u in range(4):
    e(f"buffer_load_dwordx4 {vr(QD+4*u,4)}, {v(QT) if u < 2 else v(QT+6)}, {S_WS}, 0 offen offset:{(u&1)*4*QH_RB} {a.qpol}")
e(f"buffer_load_dwordx4 {vr(QD+16,4)}, {v(QT+1)}, {S_WS}, 0 offen {a.qpol}")

e("s_waitcnt vmcnt(0)")

check4(QD, v(QT+2), v(QT+3), "vcc")
for u in range(1, 5):
    check4(QD+4*u, v(QT+2), v(QT+3), f"s[12:13]")
    nop(1)
    e("s_or_b64 vcc, vcc, s[12:13]")
nop(1)
e("s_cbranch_vccz L_qok")
e(f"s_add_u32 {sCnt}, {sCnt}, 1")
e(f"s_cmp_gt_u32 {sCnt}, 20000")
e("s_cbranch_scc1 L_qok")
e("s_sleep 2")
e("s_branch L_qpoll")
lab("L_qok")
for k in range(20): e(f"v_and_b32 {v(QD+k)}, 0xffffff00, {v(QD+k)}")
for u in range(1, 4):
    for k in range(4):
        e(f"v_add_f32 {v(QD+k)}, {v(QD+k)}, {v(QD+4*u+k)}")
nop(2)
e(f"v_permlane32_swap_b32 {v(QD)}, {v(QD+2)}")
e(f"v_permlane32_swap_b32 {v(QD+1)}, {v(QD+3)}")
nop(1)
e(f"v_add_f32 {v(QD)}, {v(QD)}, {v(QD+2)}")
e(f"v_add_f32 {v(QD+1)}, {v(QD+1)}, {v(QD+3)}")
e(f"v_and_b32 {vT0}, 31, {vLane}")
e(f"v_lshrrev_b32 {vT1}, 5, {vLane}")
e(f"v_lshlrev_b32 {vT1}, 2, {vT1}")
e(f"v_lshl_add_u32 {vT0}, {vT0}, 3, {vT1}")
e(f"v_cvt_pk_bf16_f32 {v(QD)}, {v(QD)}, {v(QD+1)}")
e(f"ds_write_b32 {vT0}, {v(QD)} offset:{LDS_Q}")
HD = QD + 16
for ctl in ("row_ror:4", "row_ror:8"):
    for k in range(4):
        e(f"v_add_f32_dpp {v(HD+k)}, {v(HD+k)}, {v(HD+k)} {ctl} row_mask:0xf bank_mask:0xf")
for k in range(4): e(f"v_mov_b32 {v(QT+2+k)}, {v(HD+k)}")
nop(1)
for k in range(4): e(f"v_permlane16_swap_b32 {v(HD+k)}, {v(QT+2+k)}")
nop(1)
for k in range(4): e(f"v_add_f32 {v(HD+k)}, {v(HD+k)}, {v(QT+2+k)}")
for k in range(4): e(f"v_mul_f32 {v(QT+2+k)}, 0xbfb8aa3b, {v(HD+k)}")
for k in range(4): e(f"v_exp_f32 {v(QT+2+k)}, {v(QT+2+k)}")
for k in range(4): e(f"v_add_f32 {v(QT+2+k)}, 1.0, {v(QT+2+k)}")
for k in range(4): e(f"v_rcp_f32 {v(QT+2+k)}, {v(QT+2+k)}")
for k in range(4): e(f"v_mul_f32 {v(HD+k)}, {v(HD+k)}, {v(QT+2+k)}")
e(f"v_cvt_pk_bf16_f32 {v(HD)}, {v(HD)}, {v(HD+1)}")
e(f"v_cvt_pk_bf16_f32 {v(HD+1)}, {v(HD+2)}, {v(HD+3)}")
e(f"v_and_b32 {vT0}, 3, {vLane}")
e(f"v_lshlrev_b32 {vT0}, 3, {vT0}")
e(f"ds_write_b64 {vT0}, {vr(HD,2)} offset:{LDS_H}")
stamp("q ready")
stampval("q retries", sCnt)
lab("L_noq")
e(f"s_waitcnt vmcnt({nA}) lgkmcnt(0)")
e("s_barrier")
stamp("Ra A")
for t in range(8): v_load(t)
e("s_branch L_J2")
lab("L_B0")
kv_consts()
e("s_waitcnt lgkmcnt(0)")
e("s_barrier")
stamp("B kernarg")
mk_srd("K", 18, 134217728)
e(f"s_cmp_eq_u32 {sW}, 7")
e(f"s_cselect_b32 {sT[0]}, {sIsRed}, 0")
e(f"s_cmp_eq_u32 {sT[0]}, 0")
e("s_cbranch_scc1 L_nogate_ld")
e(f"s_mul_i32 {sT[0]}, {sB}, 1280")
e(f"v_add_u32 {vT1}, {sT[0]}, {vL4}")
for u in range(5):
    e(f"global_load_dword {v(PG+u)}, {vT1}, s[16:17] offset:{u*256}")
for u in range(5):
    e(f"global_load_dword {v(PG+5+u)}, {vL4}, s[32:33] offset:{u*256}")
lab("L_nogate_ld")
if a.codepf:
    e(f"s_cmp_eq_u32 {sW}, {a.codepf_wave}")
    e("s_cbranch_scc0 L_nocodepf")
    e("s_getpc_b64 s[36:37]")
    lab("L_pcref")
    e(f"s_sub_u32 s36, s36, L_pcref-{NAME}")
    e("s_subb_u32 s37, s37, 0")
    e(f"s_lshr_b32 {sT[0]}, s2, 3")
    e(f"s_mul_i32 {sT[1]}, {sT[0]}, CODE_MAGIC")
    e(f"s_lshr_b32 {sT[1]}, {sT[1]}, 16")
    e(f"s_mul_i32 {sT[1]}, {sT[1]}, CODE_CHUNKS")
    e(f"s_sub_u32 {sT[0]}, {sT[0]}, {sT[1]}")
    e(f"s_lshl_b32 {sT[0]}, {sT[0]}, 10")
    e(f"v_lshl_add_u32 {vT0}, {vLane}, 4, {sT[0]}")
    e(f"v_min_u32 {vT0}, CODE_LAST, {vT0}")
    e(f"global_load_dwordx4 {vr(V0+8,4)}, {vT0}, s[36:37]")
    lab("L_nocodepf")
if a.tlbwarm:
    mk_srd("V", 20, 134217728)
    mk_srd("WO", 24, 4096 * 640 * 2)
    mk_srd("W2", 30, "s13")
    mk_srd("WS", 38, WS_SIZE)
    e(f"s_mul_i32 {sT[4]}, {sH}, 163840")
    e(f"s_mul_i32 {sT[5]}, {sP}, {16*1280}")
    e(f"v_mov_b32 v8, 0")
    e(f"v_and_b32 v9, 0xffffffc0, {vKV}")
    e(f"buffer_load_dword v{V0}, v9, {S_V}, {sKO[0]} offen{KVP}")
    e(f"buffer_load_dword v{V0+1}, v8, {S_WO}, {sT[4]} offen{WP}")
    e(f"buffer_load_dword v{V0+2}, v8, {S_W2}, {sT[5]} offen{WP}")
    e(f"buffer_load_dword v{V0+3}, v8, {S_WS}, 0 offen offset:{WS_EPOCH+128} sc1")
for t in range(a.kfirst): k_load(t)
stamp("B first K")
late_srds(skipk=True)
lane_consts()
dma_scalars()
consts()
tr_addr()
mix_loads(k_load, a.kfirst)
stamp("B mix issued")
for t in range(16): v_load(t)
stamp("B V issued")
e(f"s_cmp_eq_u32 {sW}, 7")
e(f"s_cselect_b32 {sT[0]}, {sIsRed}, 0")
e(f"s_cmp_eq_u32 {sT[0]}, 0")
e("s_cbranch_scc1 L_nogate")
e(f"s_waitcnt vmcnt({50 + (4 if a.tlbwarm else 0) + (1 if a.codepf and a.codepf_wave == 7 else 0)})")
e(f"v_dot2_f32_bf16 {vT0}, {v(PG)}, {v(PG+5)}, 0")
for u in range(1, 5):
    e(f"v_dot2_f32_bf16 {vT0}, {v(PG+u)}, {v(PG+5+u)}, {vT0}")
nop(3)
for ctl in ("quad_perm:[1,0,3,2]", "quad_perm:[2,3,0,1]", "row_ror:4", "row_ror:8"):
    e(f"v_add_f32_dpp {vT0}, {vT0}, {vT0} {ctl} row_mask:0xf bank_mask:0xf")
    nop(2)
for sw in ("v_permlane16_swap_b32", "v_permlane32_swap_b32"):
    e(f"v_mov_b32 {vT1}, {vT0}")
    nop(2)
    e(f"{sw} {vT0}, {vT1}")
    nop(1)
    e(f"v_add_f32 {vT0}, {vT0}, {vT1}")
e(f"v_mul_f32 {vT0}, 0xbfb8aa3b, {vT0}")
e(f"v_exp_f32 {vT0}, {vT0}")
nop(1)
e(f"v_add_f32 {vT0}, 1.0, {vT0}")
e(f"v_rcp_f32 {vT0}, {vT0}")
e(f"v_mov_b32 {vT1}, {LDS_G}")
nop(1)
e(f"ds_write_b32 {vT1}, {vT0}")
lab("L_nogate")
e("s_waitcnt vmcnt(16) lgkmcnt(0)")
e("s_barrier")
e(f"v_mov_b32 {vT0}, 0")
e(f"ds_read_b32 {vNonce}, {vT0} offset:{LDS_NONCE}")
stamp("Ra B")
lab("L_J2")
def tr_reads(pairs):
    for (ks, slot) in pairs:
        for t in range(5):
            r = WO0 + (ks*5 + t)*4
            base, off = vTR[t], slot*40960
            if off + 5120 > 65535:
                base, off = v(240+t), 0
            e(f"ds_read_b64_tr_b16 {vr(r,2)}, {base} offset:{off}")
            e(f"ds_read_b64_tr_b16 {vr(r+2,2)}, {base} offset:{off + 5120}")
for t in range(5):
    e(f"v_add_u32 {v(240+t)}, {2*40960}, {vTR[t]}")
tr_reads([(0, 0), (1, 1), (2, 2)])
e(f"v_lshrrev_b32 {vT1}, 4, {vLane}")
e(f"v_mul_u32_u24 {vT1}, 5120, {vT1}")
e(f"v_add_u32 {vT1}, {LDS_WO - LDS_W2}, {vT1}")
for t in range(5):
    e(f"v_sub_u32 {v(240+t)}, {vTR[t]}, {vT1}")
for t in range(5):
    e(f"ds_read_b64_tr_b16 {vr(W20+2*t,2)}, {v(240+t)}")
e(f"v_and_b32 {vT0}, 15, {vLane}")
e(f"v_lshlrev_b32 {vT0}, 4, {vT0}")
e(f"ds_read_b128 {vr(vQ,4)}, {vT0} offset:{LDS_Q}")
e(f"v_lshrrev_b32 {vT1}, 4, {vLane}")
e(f"v_lshlrev_b32 {vT1}, 3, {vT1}")
e(f"ds_read_b64 {vr(vHop,2)}, {vT1} offset:{LDS_H}")
e("s_waitcnt lgkmcnt(0)")
e("s_barrier")
stamp("Rb")
KS = lambda t: K0 + 4*t
S = [KS(t) for t in range(4)]
vM, vLs = "v17", "v18"
def allred(reg, op, tmp, rows=True, quads=False):
    if quads:
        for ctl in ("quad_perm:[1,0,3,2]", "quad_perm:[2,3,0,1]"):
            e(f"{op}_dpp {reg}, {reg}, {reg} {ctl} row_mask:0xf bank_mask:0xf"); nop(2)
    for ctl in ("row_ror:4", "row_ror:8"):
        e(f"{op}_dpp {reg}, {reg}, {reg} {ctl} row_mask:0xf bank_mask:0xf"); nop(2)
    if rows:
        for sw in ("v_permlane16_swap_b32", "v_permlane32_swap_b32"):
            e(f"v_mov_b32 {tmp}, {reg}"); nop(2)
            e(f"{sw} {reg}, {tmp}"); nop(1)
            e(f"{op} {reg}, {reg}, {tmp}")
def qk_softmax():
    cm("QK^T")
    for i in range(4):
        for t in range(16):
            c = "0" if i == 0 else v(KS(t))
            e(f"v_dot2_f32_bf16 {v(KS(t))}, {v(KS(t)+i)}, {v(vQ+i)}, {c}")
    cm("16-lane reduce-scatter of the scores")
    for t in range(8):
        e(f"v_add_f32_dpp {v(KS(t))}, {v(KS(t))}, {v(KS(t))} row_ror:8 row_mask:0xf bank_mask:0x3")
    for t in range(8):
        e(f"v_add_f32_dpp {v(KS(t))}, {v(KS(t+8))}, {v(KS(t+8))} row_ror:8 row_mask:0xf bank_mask:0xc")
    for t in range(4):
        e(f"v_add_f32_dpp {v(KS(t))}, {v(KS(t))}, {v(KS(t))} row_half_mirror row_mask:0xf bank_mask:0x5")
    for t in range(4):
        e(f"v_add_f32_dpp {v(KS(t))}, {v(KS(t+4))}, {v(KS(t+4))} row_half_mirror row_mask:0xf bank_mask:0xa")
    for ctl in ("quad_perm:[1,0,3,2]", "quad_perm:[2,3,0,1]"):
        for t in range(4):
            e(f"v_add_f32_dpp {v(KS(t))}, {v(KS(t))}, {v(KS(t))} {ctl} row_mask:0xf bank_mask:0xf")
    cm("softmax over the wave's 64 keys")
    e(f"v_max3_f32 {vT0}, {v(S[0])}, {v(S[1])}, {v(S[2])}")
    e(f"v_max_f32 {vT0}, {vT0}, {v(S[3])}")
    nop(2)
    allred(vT0, "v_max_f32", vT1)
    e(f"v_mul_f32 {vM}, {sC}, {vT0}")
    for t in range(4):
        e(f"v_fma_f32 {v(S[t])}, {v(S[t])}, {sC}, -{vM}")
    for t in range(4):
        e(f"v_exp_f32 {v(S[t])}, {v(S[t])}")
    nop(1)
    e(f"v_cvt_pk_bf16_f32 {vP01}, {v(S[0])}, {v(S[1])}")
    e(f"v_cvt_pk_bf16_f32 {vP23}, {v(S[2])}, {v(S[3])}")
    e(f"v_add_f32 {vLs}, {v(S[0])}, {v(S[1])}")
    e(f"v_add_f32 {vT0}, {v(S[2])}, {v(S[3])}")
    e(f"v_add_f32 {vLs}, {vLs}, {vT0}")
    nop(2)
    allred(vLs, "v_add_f32", vT1)
    e(f"s_lshl_b32 {sT[0]}, {sW}, 2")
    e(f"v_mov_b32 {vT0}, {sT[0]}")
    e(f"ds_write_b32 {vT0}, {vM} offset:{LDS_M}")
    e(f"ds_write_b32 {vT0}, {vLs} offset:{LDS_L}")
def publish(R0, R4, a0, a4, extra_off, tmpb):
    G0 = tmpb; G4 = tmpb + 4
    for k in range(4):
        e(f"v_mov_b32_dpp {v(G0+k)}, {R0} quad_perm:[{k},{k},{k},{k}] row_mask:0xf bank_mask:0xf")
    for k in range(4):
        e(f"v_mov_b32_dpp {v(G4+k)}, {R4} quad_perm:[{k},{k},{k},{k}] row_mask:0xf bank_mask:0xf")
    tag4([v(G0+k) for k in range(4)])
    tag4([v(G4+k) for k in range(4)])
    e("s_mov_b32 exec_lo, 0x11111111")
    e("s_mov_b32 exec_hi, 0x11111111")
    e(f"buffer_store_dwordx4 {vr(G0,4)}, {a0}, {S_WS}, {extra_off} offen sc1")
    e("s_mov_b32 exec_lo, 0x1111")
    e("s_mov_b32 exec_hi, 0")
    e(f"buffer_store_dwordx4 {vr(G4,4)}, {a4}, {S_WS}, {extra_off} offen sc1")
    e("s_mov_b64 exec, -1")
FD = 32
PUB = 52
sAttOff, sFfnOff = sT[3], sT[2]
def pub_addr():
    e(f"s_mul_i32 {sT[0]}, {sB}, 40")
    e(f"s_mul_i32 {sT[1]}, {sW}, 5")
    e(f"s_add_u32 {sT[0]}, {sT[0]}, {sT[1]}")
    e(f"s_lshl_b32 {sT[0]}, {sT[0]}, 7")
    e(f"s_add_u32 {sT[0]}, {sT[0]}, {sP}")
    e(f"s_lshl_b32 {sT[0]}, {sT[0]}, 6")
    e(f"v_lshrrev_b32 {vT0}, 4, {vLane}")
    e(f"v_lshlrev_b32 {vT0}, 13, {vT0}")
    e(f"v_bfe_u32 {vT1}, {vLane}, 2, 2")
    e(f"v_lshlrev_b32 {vT1}, 4, {vT1}")
    e(f"v_add3_u32 {v(PUB+8)}, {vT0}, {vT1}, {sT[0]}")
    e(f"s_add_u32 {sT[0]}, {sT[0]}, {4*8192}")
    e(f"v_add_u32 {v(PUB+9)}, {sT[0]}, {vT1}")
    e(f"v_add_u32 {v(PUB+10)}, {sOOB}, {v(PUB+8)}")
    e(f"v_add_u32 {v(PUB+11)}, {sOOB}, {v(PUB+9)}")
    e(f"s_mov_b32 {sFfnOff}, {WS_FFN}")
    e(f"s_mov_b32 {sAttOff}, {WS_ATT}")
def ffn_block():
    cm("FFN second projection: 5 tiles, K=16")
    for t in range(5):
        e(f"v_mfma_f32_16x16x16_bf16 {vr(FD+4*t,4)}, {vr(vHop,2)}, {vr(W20+2*t,2)}, 0")
    pub_addr()
    nop(2)
    FR0 = "v19"
    e(f"v_mov_b32 {FR0}, {v(FD)}")
    for g in range(1, 4):
        e(f"v_mov_b32_dpp {FR0}, {v(FD+4*g)} quad_perm:[0,1,2,3] row_mask:{1<<g:#x} bank_mask:0xf")
    nop(2)
    publish(FR0, v(FD+16), v(PUB+10), v(PUB+11), sFfnOff, PUB)
def pv_block(younger, nda=0):
    cm("PV")
    for i in range(8): e(f"v_mov_b32 {v(vAcc+i)}, 0")
    for pr in range(8):
        s0, s1 = 2*pr, 2*pr + 1
        extra = 0
        if nda:
            pos = {1: [12], 2: [11, 13], 3: [10, 12, 14], 4: [10, 11, 13, 14], 5: [9, 10, 12, 13, 14]}[nda]
            extra = sum(1 for p in pos if p >= s1)
        e(f"s_waitcnt vmcnt({15 - s1 + younger + extra})")
        A = V0 + 4*s0; B = V0 + 4*s1
        for i in range(4):
            e(f"v_perm_b32 {v(vPT+2*i)}, {v(B+i)}, {v(A+i)}, {sPLo}")
            e(f"v_perm_b32 {v(vPT+2*i+1)}, {v(B+i)}, {v(A+i)}, {sPHi}")
        P = vP01 if (s0 & 3) == 0 else vP23
        for i in range(8):
            e(f"v_dot2c_f32_bf16_dpp {v(vAcc+i)}, {P}, {v(vPT+i)} row_newbcast:{4*(s0>>2)} row_mask:0xf bank_mask:0xf")
    e(f"s_mul_i32 {sT[0]}, {sW}, {O_STRIDE}")
    e(f"v_and_b32 {vT0}, 15, {vLane}")
    e(f"v_lshrrev_b32 {vT1}, 4, {vLane}")
    for i in range(4): e(f"v_permlane32_swap_b32 {v(vAcc+i)}, {v(vAcc+4+i)}")
    e(f"v_lshlrev_b32 {vT1}, 2, {vT1}")
    for i in range(4): e(f"v_add_f32 {v(vAcc+i)}, {v(vAcc+i)}, {v(vAcc+4+i)}")
    e(f"v_lshl_add_u32 {vT0}, {vT0}, 4, {vT1}")
    e(f"v_add_u32 {vT0}, {sT[0]}, {vT0}")
    e(f"v_permlane16_swap_b32 {v(vAcc)}, {v(vAcc+2)}")
    e(f"v_permlane16_swap_b32 {v(vAcc+1)}, {v(vAcc+3)}")
    nop(1)
    e(f"v_add_f32 {v(vAcc)}, {v(vAcc)}, {v(vAcc+2)}")
    e(f"v_add_f32 {v(vAcc+1)}, {v(vAcc+1)}, {v(vAcc+3)}")
    e(f"v_cvt_pk_bf16_f32 {v(vAcc)}, {v(vAcc)}, {v(vAcc+1)}")
    e(f"ds_write_b32 {vT0}, {v(vAcc)} offset:{LDS_O}")
RF, RM, RA = 80, 88, 96
vRA, vRM, vRW, vRG = "v104", "v105", 106, "v110"
sRedOn = sT[8]
mLo, mHi = "s[20:21]", "s[22:23]"
def red_loads_fm(masked=False):
    if masked: e(f"s_mov_b64 exec, {mLo}")
    e(f"buffer_load_dwordx4 {vr(RF,4)}, {vRA}, {S_WS}, {sFfnOff} offen sc1")
    e(f"buffer_load_dwordx4 {vr(RM,4)}, {vRM}, {S_WS}, 0 offen sc1")
    if masked: e(f"s_mov_b64 exec, {mHi}")
    e(f"buffer_load_dwordx4 {vr(RF+4,4)}, {vRA}, {S_WS}, {sFfnOff} offen offset:1024 sc1")
    e(f"buffer_load_dwordx4 {vr(RM+4,4)}, {vRM}, {S_WS}, 0 offen offset:1024 sc1")
    if masked: e("s_mov_b64 exec, -1")
def red_loads_a(masked=False):
    if masked: e(f"s_mov_b64 exec, {mLo}")
    e(f"buffer_load_dwordx4 {vr(RA,4)}, {vRA}, {S_WS}, {sAttOff} offen sc1")
    if masked: e(f"s_mov_b64 exec, {mHi}")
    e(f"buffer_load_dwordx4 {vr(RA+4,4)}, {vRA}, {S_WS}, {sAttOff} offen offset:1024 sc1")
    if masked: e("s_mov_b64 exec, -1")

def ml_publish(wave, skip):
    e(f"s_cmp_eq_u32 {sW}, {wave}")
    e(f"s_cbranch_scc0 {skip}")
    MLR = 80
    e("v_mov_b32 v96, 0")
    e(f"ds_read_b128 {vr(MLR,4)}, v96 offset:{LDS_M}")
    e(f"ds_read_b128 {vr(MLR+4,4)}, v96 offset:{LDS_M+16}")
    e(f"ds_read_b128 {vr(MLR+8,4)}, v96 offset:{LDS_L}")
    e(f"ds_read_b128 {vr(MLR+12,4)}, v96 offset:{LDS_L+16}")
    e(f"s_lshl_b32 {sT[0]}, {sB}, 7")
    e(f"s_add_u32 {sT[0]}, {sT[0]}, {sP}")
    e(f"s_lshl_b32 {sT[0]}, {sT[0]}, 4")
    e(f"s_add_u32 {sT[0]}, {sT[0]}, {WS_ML}")
    e("s_waitcnt lgkmcnt(0)")
    for r in range(8): e(f"v_sub_f32 {v(MLR+r)}, {v(MLR+r)}, {v(MA)}")
    for r in range(8): e(f"v_exp_f32 {v(MLR+r)}, {v(MLR+r)}")
    e(f"v_mul_f32 v97, {v(MLR)}, {v(MLR+8)}")
    for r in range(1, 8): e(f"v_fmac_f32 v97, {v(MLR+r)}, {v(MLR+8+r)}")
    e(f"v_mov_b32 {v(MLR)}, {v(MA)}")
    e(f"v_mov_b32 {v(MLR+1)}, v97")
    e(f"v_mov_b32 {v(MLR+2)}, {vNonce}")
    e(f"v_mov_b32 {v(MLR+3)}, {vNonce}")
    e(f"v_mov_b32 v96, {sT[0]}")
    e("s_mov_b64 exec, 1")
    e(f"buffer_store_dwordx4 {vr(MLR,4)}, v96, {S_WS}, 0 offen sc1")
    e("s_mov_b64 exec, -1")
    stamp("ML pub")
MA = 16

e(f"s_cmp_ge_u32 {sW}, 4")
e("s_cbranch_scc1 L_B3")
def d3(i):
    hv, u = divmod(i, 5)
    e(f"s_add_u32 m0, {sT[6]}, {LDS_WO + hv*4*5120 + u*1024}")
    e("s_nop 0")
    e(f"buffer_load_dwordx4 {vDM[u]}, {S_WO}, {sT[5] if hv == 0 else sT[7]} offen{WP} lds")
def d3_scalars():
    e(f"s_and_b32 {sT[6]}, {sW}, 3")
    e(f"s_mul_i32 {sT[6]}, {sT[6]}, 5120")
    e(f"s_mul_i32 {sT[5]}, {sH}, 163840")
    e(f"s_add_u32 {sT[5]}, {sT[5]}, {sT[6]}")
    e(f"s_add_u32 {sT[5]}, {sT[5]}, {3*40960}")
    e(f"s_add_u32 {sT[7]}, {sT[5]}, {4*5120}")
if a.r2by == "A":
    d3_scalars()
    for t in range(8, 16): v_load(t)
    for i in range(10): d3(i)
    e("s_waitcnt vmcnt(26)")
else:
    d3_scalars()
    pos = {1: [12], 2: [11, 13], 3: [10, 12, 14], 4: [10, 11, 13, 14], 5: [9, 10, 12, 13, 14], 0: []}[a.nda]
    di = 0
    for t in range(8, 16):
        v_load(t)
        if t in pos:
            d3(di); di += 1
    e(f"s_waitcnt vmcnt({16 + a.nda})")
stamp("A V issued")
qk_softmax()
stamp("A softmax")
ffn_block()
stamp("A ffn pub")
pv_block(12 if a.r2by == "A" else 2, a.nda if a.r2by == "B" else 0)
stamp("A PV done")
if a.prio: e(f"s_setprio {a.prio}")
e("s_branch L_J4")
lab("L_B3")
qk_softmax()
stamp("B softmax")
pv_block(0)
stamp("B PV done")
ffn_block()
stamp("B ffn pub")
if a.r2by == "B":
    d3_scalars()
    for i in range(a.nda, 10): d3(i)
    stamp("B r2 issued")
lab("L_J4")
e(f"v_and_b32 {vT0}, 15, {vLane}")
e(f"v_mul_u32_u24 {vT0}, {O_STRIDE}, {vT0}")
e(f"v_lshrrev_b32 {vT1}, 4, {vLane}")
e(f"v_lshl_add_u32 {vT0}, {vT1}, 4, {vT0}")
e(f"v_and_b32 {vT1}, 1, {vT1}")
e(f"v_lshlrev_b32 {vT1}, 4, {vT1}")
e("v_mov_b32 v8, 0")
e("s_waitcnt lgkmcnt(0)")
e("s_barrier")
stamp("O barrier")
OA = 64
DA = 32
for s_ in range(4):
    e(f"ds_read_b128 {vr(OA+4*s_,4)}, {vT0} offset:{LDS_O + s_*64}")
e(f"ds_read_b128 {vr(MA,4)}, v8 offset:{LDS_M}")
e(f"ds_read_b128 {vr(MA+4,4)}, v8 offset:{LDS_M+16}")
e(f"ds_read_b128 {vr(MA+8,4)}, {vT1} offset:{LDS_M}")
if not a.r2last: tr_reads([(3, 0)])
nl = 7 if a.r2last else 17
for s_ in range(4):
    if s_ == 3:
        ml_publish(a.mlwave, "L_noml")
        lab("L_noml")
    if s_ == 3 and a.r2last:
        assert a.r2by == "B" and a.nda == 0
        e(f"s_cmp_ge_u32 {sW}, 4")
        e("s_cbranch_scc0 L_noDwait")
        e("s_waitcnt vmcnt(0)")
        lab("L_noDwait")
        e("s_barrier")
        stamp("Rc")
        tr_reads([(3, 0)])
        e("s_waitcnt lgkmcnt(0)")
    if s_ < 3: e(f"s_waitcnt lgkmcnt({min(15, nl - 1 - s_)})")
    for t in range(5):
        c = "0" if s_ == 0 else vr(DA+4*t,4)
        e(f"v_mfma_f32_16x16x32_bf16 {vr(DA+4*t,4)}, {vr(OA+4*s_,4)}, {vr(WO0+(s_*5+t)*4,4)}, {c}")
    if s_ == 1:
        e(f"s_waitcnt lgkmcnt({nl - 7})")
        e(f"v_max3_f32 {v(MA)}, {v(MA)}, {v(MA+1)}, {v(MA+2)}")
        e(f"v_max3_f32 {v(MA+3)}, {v(MA+3)}, {v(MA+4)}, {v(MA+5)}")
        e(f"v_max3_f32 {v(MA)}, {v(MA)}, {v(MA+6)}, {v(MA+7)}")
        e(f"v_max_f32 {v(MA)}, {v(MA)}, {v(MA+3)}")
    if s_ == 2:
        for r in range(4): e(f"v_sub_f32 {v(MA+8+r)}, {v(MA+8+r)}, {v(MA)}")
        for r in range(4): e(f"v_exp_f32 {v(MA+8+r)}, {v(MA+8+r)}")
        if not a.r2last: e("s_waitcnt lgkmcnt(0)")
nop(4)
T = [DA+4*t for t in range(5)]
for t in range(5):
    e(f"v_mul_f32 {v(T[t])}, {v(T[t])}, {v(MA+8)}")
for r in range(1, 4):
    for t in range(5):
        e(f"v_fmac_f32 {v(T[t])}, {v(T[t]+r)}, {v(MA+8+r)}")
e(f"v_mov_b32 {v(T[4]+1)}, {v(T[4])}")
e(f"v_permlane32_swap_b32 {v(T[0])}, {v(T[2])}")
e(f"v_permlane32_swap_b32 {v(T[1])}, {v(T[3])}")
e(f"v_permlane16_swap_b32 {v(T[4])}, {v(T[4]+1)}")
e(f"v_add_f32 {v(T[0])}, {v(T[0])}, {v(T[2])}")
e(f"v_add_f32 {v(T[1])}, {v(T[1])}, {v(T[3])}")
e(f"v_add_f32 {v(T[4])}, {v(T[4])}, {v(T[4]+1)}")
nop(1)
e(f"v_permlane16_swap_b32 {v(T[0])}, {v(T[1])}")
nop(1)
e(f"v_add_f32 {v(T[0])}, {v(T[0])}, {v(T[1])}")
nop(2)
publish(v(T[0]), v(T[4]), v(PUB+8), v(PUB+9), sAttOff, PUB)
stamp("att pub")
e(f"s_cmp_eq_u32 {sIsRed}, 0")
e("s_cbranch_scc1 L_fin")
RA, RF, RM = 64, 68, 72
e(f"s_and_b32 {sT[0]}, s2, 127")
e(f"s_mul_i32 {sT[1]}, {sB}, 40")
e(f"s_add_u32 {sT[1]}, {sT[1]}, {sT[0]}")
e(f"s_lshl_b32 {sT[1]}, {sT[1]}, 13")
e(f"s_lshl_b32 {sT[2]}, {sW}, 10")
e(f"s_add_u32 {sT[1]}, {sT[1]}, {sT[2]}")
e(f"v_lshl_add_u32 v76, {vLane}, 4, {sT[1]}")
e(f"s_lshl_b32 {sT[2]}, {sB}, 11")
e(f"s_lshl_b32 {sT[3]}, {sW}, 8")
e(f"s_add_u32 {sT[2]}, {sT[2]}, {sT[3]}")
e(f"s_add_u32 {sT[2]}, {sT[2]}, {WS_ML}")
e(f"v_lshrrev_b32 {vT0}, 2, {vLane}")
e(f"v_lshl_add_u32 v77, {vT0}, 4, {sT[2]}")
e(f"s_mov_b32 {sT[4]}, {WS_ATT}")
e(f"s_mov_b32 {sT[5]}, {WS_FFN}")
e(f"s_lshl_b32 {sT[6]}, {sW}, 4")
e(f"v_add_u32 {vT0}, {sT[6]}, {vT0}")
e(f"s_movk_i32 {sT[7]}, 108")
e(f"v_cmp_gt_u32 s[14:15], {sT[7]}, {vT0}")
e(f"s_mov_b32 {sCnt}, 0")
lab("L_rpoll1")
e(f"buffer_load_dwordx4 {vr(RF,4)}, v76, {S_WS}, {sT[5]} offen sc1")
e(f"buffer_load_dwordx4 {vr(RM,4)}, v77, {S_WS}, 0 offen sc1")
e(f"buffer_load_dwordx4 {vr(RA,4)}, v76, {S_WS}, {sT[4]} offen sc1")
e("s_waitcnt vmcnt(1)")
check4(RF, vT0, vT1, "vcc")
e(f"v_cmp_ne_u32 s[12:13], {v(RM+2)}, {vNonce}")
nop(1)
e("s_and_b64 vcc, vcc, s[14:15]")
e("s_or_b64 vcc, vcc, s[12:13]")
nop(1)
e("s_cbranch_vccz L_rok1")
e(f"s_add_u32 {sCnt}, {sCnt}, 1")
e(f"s_cmp_gt_u32 {sCnt}, 20000")
e("s_cbranch_scc1 L_rok1")
e("s_waitcnt vmcnt(0)")
e(f"s_sleep {a.sleep}")
e("s_branch L_rpoll1")
lab("L_rok1")
e(f"v_mov_b32 {vT0}, {LDS_G}")
e(f"ds_read_b32 v78, {vT0}")
e(f"v_mov_b32 {vT1}, {v(RM)}")
nop(1)
for ctl in ("row_ror:4", "row_ror:8"):
    e(f"v_max_f32_dpp {vT1}, {vT1}, {vT1} {ctl} row_mask:0xf bank_mask:0xf")
    nop(2)
e(f"v_sub_f32 {v(RM)}, {v(RM)}, {vT1}")
e(f"v_exp_f32 {v(RM)}, {v(RM)}")
nop(1)
e(f"v_mul_f32 {v(RM+1)}, {v(RM+1)}, {v(RM)}")
nop(2)
for ctl in ("row_ror:4", "row_ror:8"):
    e(f"v_add_f32_dpp {v(RM+1)}, {v(RM+1)}, {v(RM+1)} {ctl} row_mask:0xf bank_mask:0xf")
    nop(2)
e(f"v_rcp_f32 {v(RM+1)}, {v(RM+1)}")
e("s_waitcnt lgkmcnt(0)")
e(f"v_mul_f32 {v(RM)}, {v(RM)}, v78")
e(f"v_sub_f32 v78, 1.0, v78")
e(f"v_mul_f32 {v(RM)}, {v(RM)}, {v(RM+1)}")
for k in range(4):
    e(f"v_and_b32 {v(RF+k)}, 0xffffff00, {v(RF+k)}")
for k in range(4):
    e(f"v_cndmask_b32 {v(RF+k)}, 0, {v(RF+k)}, s[14:15]")
for k in range(4):
    e(f"v_mul_f32 {v(RF+k)}, v78, {v(RF+k)}")
e(f"s_mov_b32 {sCnt}, 0")
for _ in range(a.depth - 1):
    e(f"buffer_load_dwordx4 {vr(RA,4)}, v76, {S_WS}, {sT[4]} offen sc1")
lab("L_rpoll2")
e(f"s_waitcnt vmcnt({a.depth - 1})")
check4(RA, vT0, vT1, "s[20:21]")
nop(1)
e("s_or_b64 s[12:13], s[20:21], s[20:21]")
e("s_cbranch_scc0 L_rok2")
e(f"s_add_u32 {sCnt}, {sCnt}, 1")
e(f"s_cmp_gt_u32 {sCnt}, 40000")
e("s_cbranch_scc1 L_rok2")
if a.sleep: e(f"s_sleep {a.sleep}")
if a.mask: e("s_mov_b64 exec, s[20:21]")
e(f"buffer_load_dwordx4 {vr(RA,4)}, v76, {S_WS}, {sT[4]} offen sc1")
if a.mask: e("s_mov_b64 exec, -1")
e("s_branch L_rpoll2")
lab("L_rok2")
stamp("polled")
stampval("final retries", sCnt)
for k in range(4):
    e(f"v_and_b32 {v(84+k)}, 0xffffff00, {v(RA+k)}")
for k in range(4):
    e(f"v_fmac_f32 {v(RF+k)}, {v(RM)}, {v(84+k)}")
nop(1)
for ctl in ("row_ror:4", "row_ror:8"):
    for k in range(4):
        e(f"v_add_f32_dpp {v(RF+k)}, {v(RF+k)}, {v(RF+k)} {ctl} row_mask:0xf bank_mask:0xf")
nop(1)
e(f"v_permlane32_swap_b32 {v(RF)}, {v(RF+2)}")
e(f"v_permlane32_swap_b32 {v(RF+1)}, {v(RF+3)}")
nop(1)
e(f"v_add_f32 {v(RF)}, {v(RF)}, {v(RF+2)}")
e(f"v_add_f32 {v(RF+1)}, {v(RF+1)}, {v(RF+3)}")
nop(1)
e(f"v_permlane16_swap_b32 {v(RF)}, {v(RF+1)}")
e(f"v_and_b32 {vT0}, 3, {vLane}")
e(f"v_lshrrev_b32 {vT1}, 4, {vLane}")
e(f"v_lshl_add_u32 {vT0}, {vT0}, 2, {vT1}")
e(f"s_lshl_b32 {sT[0]}, {sW}, 2")
e(f"v_add_f32 {v(RF)}, {v(RF)}, {v(RF+1)}")
e(f"v_lshl_add_u32 {vT0}, {vT0}, 5, {sT[0]}")
e(f"ds_write_b32 {vT0}, {v(RF)} offset:{LDS_RED}")
e("s_waitcnt lgkmcnt(0)")
e("s_barrier")
e(f"s_cmp_eq_u32 {sW}, 0")
e("s_cbranch_scc0 L_fin")
e(f"v_and_b32 {vT0}, 15, {vLane}")
e(f"v_lshlrev_b32 {vT1}, 5, {vT0}")
FS = 80
e(f"ds_read_b128 {vr(FS,4)}, {vT1} offset:{LDS_RED}")
e(f"ds_read_b128 {vr(FS+4,4)}, {vT1} offset:{LDS_RED+16}")
e(f"s_and_b32 {sT[0]}, s2, 127")
e(f"s_lshl_b32 {sT[0]}, {sT[0]}, 5")
e(f"s_mul_i32 {sT[1]}, {sB}, 1280")
e(f"s_add_u32 {sT[0]}, {sT[0]}, {sT[1]}")
e(f"v_lshl_add_u32 {vT0}, {vT0}, 1, {sT[0]}")
e("s_waitcnt lgkmcnt(0)")
for k in range(4): e(f"v_add_f32 {v(FS+k)}, {v(FS+k)}, {v(FS+4+k)}")
e(f"v_add_f32 {v(FS)}, {v(FS)}, {v(FS+1)}")
e(f"v_add_f32 {v(FS+2)}, {v(FS+2)}, {v(FS+3)}")
e(f"v_add_f32 {v(FS)}, {v(FS)}, {v(FS+2)}")
e(f"v_cvt_pk_bf16_f32 {v(FS)}, {v(FS)}, {v(FS)}")
e("s_mov_b32 exec_lo, 0xffff")
e("s_mov_b32 exec_hi, 0")
e(f"buffer_store_short {v(FS)}, {vT0}, {S_OUT}, 0 offen")
e("s_cmp_eq_u32 s2, 0")
e("s_cbranch_scc0 L_noepoch")
e("s_mov_b32 exec_lo, 1")
e(f"v_mov_b32 {vT0}, {WS_EPOCH}")
e(f"buffer_store_dword {vNonce}, {vT0}, {S_WS}, 0 offen")
lab("L_noepoch")
e("s_mov_b64 exec, -1")
lab("L_fin")
if a.tfix:
    e("s_cmp_eq_u32 s2, 0")
    e("s_cbranch_scc0 L_tfix_done")
    e(f"s_add_u32 s96, s100, {a.tfix}")
    lab("L_tfix")
    e("s_memrealtime s[98:99]")
    e("s_waitcnt lgkmcnt(0)")
    e("s_sub_u32 s97, s98, s96")
    e("s_cmp_lt_i32 s97, 0")
    e("s_cbranch_scc1 L_tfix")
    lab("L_tfix_done")
stamp("end")
if a.prof:
    e(f"s_lshl_b32 {sT[0]}, s2, 3")
    e(f"s_add_u32 {sT[0]}, {sT[0]}, {sW}")
    e(f"s_lshl_b32 {sT[0]}, {sT[0]}, 7")
    e(f"s_add_u32 {sT[0]}, {sT[0]}, {WS_PROF}")
    e(f"v_add_u32 {vT0}, {sT[0]}, {vL4}")
    e("s_mov_b32 exec_lo, -1")
    e("s_mov_b32 exec_hi, 0")
    e(f"buffer_store_dword v255, {vT0}, {S_WS}, 0 offen")
if a.dbgspan:
    e("s_cmp_ge_u32 s2, 8")
    e("s_cbranch_scc1 L_end")
    e(f"s_cmp_lg_u32 {sW}, 0")
    e("s_cbranch_scc1 L_end")
    e("s_mov_b32 s96, s100")
    e("s_memrealtime s[100:101]")
    e("s_load_dwordx2 s[12:13], s[0:1], 80")
    e("s_waitcnt lgkmcnt(0)")
    e("v_mov_b32 v20, s96")
    e("v_mov_b32 v21, s100")
    e("s_lshl_b32 s96, s2, 3")
    e("v_mov_b32 v22, s96")
    e("s_mov_b32 exec_lo, 1")
    e("s_mov_b32 exec_hi, 0")
    e("global_store_dwordx2 v22, v[20:21], s[12:13]")
lab("L_end")
e("s_endpgm")
lab("L_codeend")


L += ['.section .rodata,"a"', ".p2align 6", f".amdhsa_kernel {NAME}",
      "  .amdhsa_next_free_vgpr 256", "  .amdhsa_next_free_sgpr 102", "  .amdhsa_accum_offset 256",
      "  .amdhsa_group_segment_fixed_size 0", "  .amdhsa_kernarg_size 96", "  .amdhsa_user_sgpr_count 2",
      "  .amdhsa_user_sgpr_kernarg_segment_ptr 1", "  .amdhsa_system_sgpr_workgroup_id_x 1",
      "  .amdhsa_float_denorm_mode_32 3", ".end_amdhsa_kernel"]
text = "\n".join(L) + "\n"
if a.codepf:
    import subprocess, tempfile, os, re
    def subst(t, nbytes):
        chunks = (nbytes + 1023) // 1024
        return (t.replace("CODE_MAGIC", str(0x10000 // chunks + 1)).replace("CODE_CHUNKS", str(0x1000 + chunks) if nbytes == 0 else str(chunks))
                 .replace("CODE_LAST", str(((nbytes - 16) & ~15) if nbytes else 0x12345)))
    with tempfile.TemporaryDirectory() as d:
        src = os.path.join(d, "k.s"); obj = os.path.join(d, "k.o")
        t0 = text.replace("CODE_MAGIC", "0x12345").replace("CODE_CHUNKS", "0x12345").replace("CODE_LAST", "0x12345")
        open(src, "w").write(t0)
        subprocess.run(["clang", "-x", "assembler", "-target", "amdgcn-amd-amdhsa", "-mcpu=gfx950", "-c", src, "-o", obj], check=True)
        nm = subprocess.run(["llvm-objdump", "-d", "--mcpu=gfx950", obj], capture_output=True, text=True).stdout
        last = re.findall(r"// ([0-9A-F]{12}):", nm)[-1]
        nbytes = int(last, 16) + 4
    chunks = (nbytes + 1023) // 1024
    magic = 0x10000 // chunks + 1
    assert all(((i * magic) >> 16) == i // chunks for i in range(32))
    text = text.replace("CODE_MAGIC", f"{magic:#x}").replace("CODE_LAST", f"{(nbytes - 16) & ~15:#x}")
    text = text.replace("CODE_CHUNKS", str(chunks))
open(a.o, "w").write(text)
if a.prof:
    open(a.o + ".stamps", "w").write("\n".join(PROF_NAMES) + "\n")
```

```python
import argparse, sys

ap = argparse.ArgumentParser()
ap.add_argument("-o", default="kernel.s")
ap.add_argument("--prof", type=int, default=0)
ap.add_argument("--kvpol", default="nt")
ap.add_argument("--wpol", default="nt")
ap.add_argument("--dump", type=int, default=0)
ap.add_argument("--sleep", type=int, default=1)
ap.add_argument("--dper", type=int, default=2)
ap.add_argument("--dperb", type=int, default=2)
ap.add_argument("--kfirst", type=int, default=7)
ap.add_argument("--r2last", type=int, default=1)
ap.add_argument("--r2by", default="B")
ap.add_argument("--nda", type=int, default=0)
ap.add_argument("--outpol", default="")
ap.add_argument("--rperm", type=int, default=0)
ap.add_argument("--bord", default="FD")
ap.add_argument("--tfix", type=int, default=0)
ap.add_argument("--codepf", type=int, default=0)
ap.add_argument("--codepf_wave", type=int, default=4)
ap.add_argument("--mlwave", type=int, default=0)
ap.add_argument("--depth", type=int, default=1)
ap.add_argument("--sleep1", type=int, default=4)
ap.add_argument("--mask", type=int, default=0)
ap.add_argument("--prio", type=int, default=1)
ap.add_argument("--tlbwarm", type=int, default=0)
ap.add_argument("--qpol", default="sc1")
ap.add_argument("--mix2", type=int, default=0)
ap.add_argument("--dbgspan", type=int, default=0)
a = ap.parse_args()

NAME = "gated_mix__sliding_block_cached__dense_activation_silu__decode_kernel"
L = []
def e(s): L.append("    " + s)
def lab(s): L.append(s + ":")
def cm(s): L.append("    ; " + s)
KVP = (" " + a.kvpol) if a.kvpol else ""
WP = (" " + a.wpol) if a.wpol else ""

WS_EPOCH = 0
WS_QH = 4096
QH_RB = 768
WS_ATT = WS_QH + 32 * 8 * 2 * QH_RB
WS_FFN = WS_ATT + 2 * 40 * 128 * 64
WS_ML = WS_FFN + 2 * 40 * 128 * 64
WS_END = WS_ML + 2 * 128 * 16
WS_PROF = 4 << 20
WS_DUMP = 8 << 20
WS_SIZE = 16 << 20

LDS_P = 0
LDS_O = LDS_P + 4 * 1536
O_STRIDE = 272
LDS_Q = LDS_O + 16 * O_STRIDE
LDS_H = LDS_Q + 256
LDS_M = LDS_H + 32
LDS_L = LDS_M + 32
LDS_G = LDS_L + 32
LDS_CNT = LDS_G + 16
LDS_CNT2 = LDS_G + 4
LDS_NONCE = LDS_G + 32
LDS_RED = LDS_G + 48
LDS_W2 = (LDS_RED + 512 + 255) // 256 * 256
LDS_WO = LDS_W2 + 20480
LDS_END = LDS_WO + 3 * 40960
LDS_SIZE = (LDS_END + 255) // 256 * 256

sWG = "s2"
S_K, S_V, S_WQ, S_WO, S_W1, S_W2, S_WS, S_OUT = [f"s[{i}:{i+3}]" for i in range(40, 72, 4)]
def srd(n): return {"K": 40, "V": 44, "WQ": 48, "WO": 52, "W1": 56, "W2": 60, "WS": 64, "OUT": 68}[n]
sW, sH, sR, sB, sJ, sP = "s3", "s4", "s5", "s6", "s7", "s8"
sNonce = "s9"
sKO = [f"s{72+i}" for i in range(4)]
sSel = [f"s{76+i}" for i in range(4)]
sPLo, sPHi = "s80", "s81"
sT = [f"s{82+i}" for i in range(10)]
sOOB = "s92"
sIsRed = "s93"
sCnt = "s94"
sWOoff = "s95"
sExec = "s[96:97]"
sChk0, sChk1 = "s98", "s99"
sLdsW = "s10"
sC = "s11"

vLane, vL4, vKV = "v0", "v1", "v2"
vTR = [f"v{3+i}" for i in range(5)]
vDM = [f"v{8+i}" for i in range(5)]
vNonce, vT0, vT1 = "v13", "v14", "v15"
K0, V0, WO0, W20 = 16, 80, 144, 224
vQ = 234
vAcc = 238
vP01, vP23 = "v246", "v247"
vPT = 64
vHop = 250
vW2A = 8
def v(i): return f"v{i}"
def vr(i, n): return f"v[{i}:{i+n-1}]"

PROF_SLOTS = 32
prof_n = [0]
def stamp(name):
    if not a.prof: return
    if a.prof == 2 and name not in ("entry", "O barrier", "end"): return
    if name in ("poll addr", "poll issued", "poll 1st ret", "poll 1 issued", "A kernarg", "B kernarg"): return
    i = prof_n[0]; prof_n[0] += 1
    assert i < PROF_SLOTS
    cm(f"stamp {i}: {name}")
    e("s_memrealtime s[100:101]")
    e("s_waitcnt lgkmcnt(0)")
    e(f"v_writelane_b32 v255, s100, {i}")
    PROF_NAMES.append(name)
PROF_NAMES = []

def stampval(name, sreg):
    if a.prof != 1: return
    i = prof_n[0]; prof_n[0] += 1
    assert i < PROF_SLOTS
    e(f"v_writelane_b32 v255, {sreg}, {i}")
    PROF_NAMES.append("#" + name)

def nop(n):
    while n > 0:
        k = min(n, 16); e(f"s_nop {k-1}"); n -= k

def tag4(regs):
    for k in range(4):
        e(f"v_perm_b32 {regs[k]}, {regs[k]}, {vNonce}, {sSel[k]}")

def check4(base, tmp0, tmp1, dst):
    e(f"v_perm_b32 {tmp0}, {v(base+1)}, {v(base)}, {sChk0}")
    e(f"v_perm_b32 {tmp1}, {v(base+3)}, {v(base+2)}, {sChk0}")
    e(f"v_perm_b32 {tmp0}, {tmp1}, {tmp0}, {sChk1}")
    e(f"v_cmp_ne_u32 {dst}, {tmp0}, {vNonce}")

L.append(f"; @launch grid=(256,1,1) block=(512,1,1) lds={LDS_SIZE}")
L.append('.amdgcn_target "amdgcn-amd-amdhsa--gfx950"')
L += [".text", f".globl {NAME}", ".p2align 8", f".type {NAME},@function", f"{NAME}:"]

PQ, PH = V0, V0 + 20
PACC = V0 + 40
PG = WO0
W2D = 238
sDMA = ["s36", "s37", sT[4], sT[5]]
sW2g, sW2l = sT[6], sT[9]
def mk_srd(name, ptr, size):
    d = srd(name)
    e(f"s_mov_b32 s{d}, s{ptr}")
    e(f"s_and_b32 s{d+1}, s{ptr+1}, 0xffff")
    e(f"s_mov_b32 s{d+2}, {size}")
    e(f"s_mov_b32 s{d+3}, 0x20000")
def k_load(t):
    e(f"buffer_load_dwordx4 {vr(K0+4*t,4)}, {vKV}, {S_K}, {sKO[t//4]} offen offset:{(t%4)*1024}{KVP}")
def v_load(t):
    e(f"buffer_load_dwordx4 {vr(V0+4*t,4)}, {vKV}, {S_V}, {sKO[t//4]} offen offset:{(t%4)*1024}{KVP}")
def lane_consts():
    e(f"s_mul_i32 {sLdsW}, {sW}, 5120")
    e(f"s_mul_i32 {sWOoff}, {sH}, 163840")
    e(f"s_add_u32 {sWOoff}, {sWOoff}, {sLdsW}")
    e(f"s_lshr_b32 s15, {sW}, 1")
    e(f"s_and_b32 s15, s15, 1")
    e(f"s_lshl_b32 s15, s15, 3")
    for u in range(5):
        e(f"v_add_u32 {vT0}, {64*u}, {vLane}")
        e(f"v_mul_u32_u24 {vT1}, 205, {vT0}")
        e(f"v_lshrrev_b32 {vT1}, 14, {vT1}")
        e(f"v_mul_u32_u24 {vDM[u]}, 80, {vT1}")
        e(f"v_sub_u32 {vT0}, {vT0}, {vDM[u]}")
        e(f"v_lshl_add_u32 {vDM[u]}, {vT1}, 1, s15")
        e(f"v_xor_b32 {vT0}, {vT0}, {vDM[u]}")
        e(f"v_lshlrev_b32 {vT0}, 4, {vT0}")
        e(f"v_mul_u32_u24 {vT1}, 1280, {vT1}")
        e(f"v_add_u32 {vDM[u]}, {vT0}, {vT1}")
    e(f"s_lshl_b32 s15, {sW}, 2")
    for u in range(3):
        d = v(W2D+u)
        e(f"v_add_u32 {vT0}, {64*u}, {vLane}")
        e(f"v_mul_u32_u24 {vT1}, 205, {vT0}")
        e(f"v_lshrrev_b32 {vT1}, 14, {vT1}")
        e(f"v_mul_u32_u24 {d}, 80, {vT1}")
        e(f"v_sub_u32 {vT0}, {vT0}, {d}")
        e(f"v_lshl_add_u32 {d}, {vT1}, 1, s15")
        e(f"v_and_b32 {d}, 14, {d}")
        e(f"v_xor_b32 {vT0}, {vT0}, {d}")
        e(f"v_lshlrev_b32 {vT0}, 4, {vT0}")
        e(f"v_mul_u32_u24 {vT1}, 1280, {vT1}")
        e(f"v_add_u32 {d}, {vT0}, {vT1}")
def dma_scalars():
    for ks in range(4):
        e(f"s_add_u32 {sDMA[ks]}, {sWOoff}, {ks*40960}")
    e(f"s_mul_i32 {sW2g}, {sP}, {16*1280}")
    e(f"s_mul_i32 {sW2l}, {sW}, 2560")
    e(f"s_add_u32 {sW2g}, {sW2g}, {sW2l}")
def dma_list():
    out = []
    for ks in range(3):
        for u in range(5):
            out.append([f"s_add_u32 m0, {sLdsW}, {LDS_WO + ks*40960 + u*1024}", "s_nop 0",
                        f"buffer_load_dwordx4 {vDM[u]}, {S_WO}, {sDMA[ks]} offen{WP} lds"])
    for u in range(3):
        g = [f"s_add_u32 m0, {sW2l}, {LDS_W2 + u*1024}"]
        g += ["s_mov_b32 exec_hi, 0"] if u == 2 else ["s_nop 0"]
        g += [f"buffer_load_dwordx4 {v(W2D+u)}, {S_W2}, {sW2g} offen{WP} lds"]
        if u == 2: g += ["s_mov_b32 exec_hi, -1"]
        out.append(g)
    return out
def late_srds(skipk=False):
    if not skipk: mk_srd("K", 18, 134217728)
    mk_srd("V", 20, 134217728)
    mk_srd("WO", 24, 4096 * 640 * 2)
    mk_srd("W2", 30, "s13")
    mk_srd("WS", 38, WS_SIZE)
    mk_srd("OUT", 34, 2560)
    if not skipk: e(f"s_load_dword {sNonce}, s[38:39], {WS_EPOCH}")
def consts():
    e(f"s_mov_b32 {sPLo}, 0x05040100")
    e(f"s_mov_b32 {sPHi}, 0x07060302")
    for k in range(4):
        e(f"s_mov_b32 {sSel[k]}, {0x07060500 + k:#x}")
    e(f"s_mov_b32 {sChk0}, 0x0c0c0400")
    e(f"s_mov_b32 {sChk1}, 0x05040100")
    import struct
    cval = struct.unpack("<I", struct.pack("<f", (128 ** -0.5) * 1.4426950408889634))[0]
    e(f"s_mov_b32 {sC}, {cval:#x}")
def tr_addr():
    e(f"v_lshrrev_b32 {vT0}, 4, {vLane}")
    e(f"v_bfe_u32 {vT1}, {vLane}, 2, 2")
    e(f"v_lshl_add_u32 v234, {vT0}, 3, {vT1}")
    e(f"v_mul_u32_u24 v234, 1280, v234")
    e(f"v_and_b32 v235, 1, {vT0}")
    e(f"v_lshlrev_b32 v235, 3, v235")
    e(f"v_lshl_add_u32 v235, {vT1}, 1, v235")
    e(f"v_and_b32 v236, 1, {vLane}")
    e(f"v_lshl_add_u32 v234, v236, 3, v234")
    e(f"v_add_u32 v234, {LDS_WO}, v234")
    e(f"v_bfe_u32 v236, {vLane}, 1, 1")
    e(f"s_mul_i32 {sT[2]}, {sW}, 10")
    for t in range(5):
        e(f"s_add_u32 {sT[3]}, {sT[2]}, {2*t}")
        e(f"v_add_u32 v237, {sT[3]}, v236")
        e(f"v_xor_b32 v237, v237, v235")
        e(f"v_lshl_add_u32 {vTR[t]}, v237, 4, v234")
    e(f"s_mul_i32 {sT[3]}, {sW}, {O_STRIDE}")
    e(f"s_add_u32 {sT[3]}, {sT[3]}, {LDS_O + 8*O_STRIDE}")
    e(f"v_add_u32 v237, {sT[3]}, {vL4}")
    e("v_mov_b32 v236, 0")
    e("ds_write_b32 v237, v236")

def mix_loads(big, t0=0, per=None):
    d = dma_list()
    per = per or a.dper
    di = 0; after = 0
    for t in range(t0, 16):
        big(t)
        if di >= len(d): after += 1
        for _ in range(per):
            if di < len(d):
                for x in d[di]: e(x)
                di += 1
    assert di == len(d)
    return after
def kv_consts():
    e(f"s_lshr_b32 {sT[0]}, s2, 3")
    e(f"s_lshl_b32 {sT[1]}, {sW}, 2")
    e(f"s_add_u32 {sT[1]}, {sT[1]}, {sT[0]}")
    for q in range(4):
        e(f"s_add_u32 {sKO[q]}, {sT[1]}, {q}")
        e(f"s_and_b32 {sKO[q]}, {sKO[q]}, 31")
        e(f"s_lshl_b32 {sKO[q]}, {sKO[q]}, 12")
    e(f"s_lshl_b32 {sT[2]}, {sB}, 5")
    e(f"s_add_u32 {sT[2]}, {sT[2]}, {sH}")
    e(f"s_lshl_b32 {sT[2]}, {sT[2]}, 21")
    e(f"s_lshl_b32 {sT[3]}, {sJ}, 17")
    e(f"s_add_u32 {sT[2]}, {sT[2]}, {sT[3]}")
    e(f"s_add_u32 {sT[2]}, {sT[2]}, {6144*256}")
    e(f"v_lshl_add_u32 {vKV}, {vLane}, 4, {sT[2]}")
def flags():
    e(f"s_and_b32 {sT[2]}, s2, 127")
    e(f"s_cmp_lt_u32 {sT[2]}, 40")
    e(f"s_cselect_b32 {sIsRed}, 1, 0")
    e(f"s_cmp_lt_u32 {sH}, 27")
    e(f"s_cselect_b32 s12, {640*1728*2}, 0")
    e(f"s_cselect_b32 s13, {1728*640*2}, 0")
    e(f"s_cselect_b32 {sOOB}, 0, 0x80000000")

e("s_cmp_ge_u32 s2, 256")
e("s_cbranch_scc1 L_end")
e("s_load_dwordx16 s[16:31], s[0:1], 0")
e("s_load_dwordx8 s[32:39], s[0:1], 64")
if a.codepf:
    e("s_getpc_b64 s[14:15]")
    lab("L_pcref")
    e("v_lshrrev_b32 v2, 6, v0")
    e("s_lshr_b32 s12, s2, 3")
    e("s_mul_i32 s12, s12, 6")
    e("v_add_u32 v3, s12, v2")
    e("v_and_b32 v3, 15, v3")
    e("v_add_u32 v3, 2, v3")
    e("v_cmp_gt_u32 vcc, 2, v2")
    e(f"s_sub_u32 s14, s14, L_pcref-{NAME}")
    e("s_subb_u32 s15, s15, 0")
    e("v_cndmask_b32 v3, v3, v2, vcc")
    e("v_and_b32 v2, 63, v0")
    e("v_lshlrev_b32 v2, 4, v2")
    e("v_lshl_add_u32 v3, v3, 10, v2")
    e("v_min_u32 v3, CODE_LAST, v3")
    e(f"global_load_dwordx4 {vr(V0+60,4)}, v3, s[14:15]")
if a.prof:
    e("v_mov_b32 v255, 0")
stamp("entry")
if a.dbgspan or a.tfix:
    e("s_memrealtime s[100:101]")
e("v_lshrrev_b32 v1, 6, v0")
e("v_and_b32 v0, 63, v0")
e(f"v_readfirstlane_b32 {sW}, v1")
e(f"s_and_b32 {sH}, s2, 7")
e(f"s_lshr_b32 {sT[0]}, s2, 3")
e(f"s_and_b32 {sT[1]}, {sT[0]}, 3")
e(f"s_lshl_b32 {sT[1]}, {sT[1]}, 3")
e(f"s_or_b32 {sH}, {sH}, {sT[1]}")
e(f"s_lshr_b32 {sR}, s2, 5")
if a.rperm: e(f"s_xor_b32 {sR}, {sR}, {a.rperm}")
e(f"s_cmp_ge_u32 {sW}, 4")
e("s_cbranch_scc0 L_A0")
e(f"s_lshr_b32 {sB}, {sR}, 2")
e(f"s_and_b32 {sJ}, {sR}, 3")
kv_consts()
e("s_waitcnt lgkmcnt(0)")
mk_srd("K", 18, 134217728)
for t in range(a.kfirst): k_load(t)
stamp("B first K")
e("s_branch L_B0")
lab("L_A0")
e(f"s_mul_i32 {sT[5]}, {sR}, 80")
e(f"s_mul_i32 {sT[6]}, {sW}, 20")
e(f"s_add_u32 {sT[5]}, {sT[5]}, {sT[6]}")
e(f"s_lshl_b32 {sT[7]}, {sT[5]}, 13")
e(f"s_lshl_b32 {sT[8]}, {sH}, 8")
e(f"s_add_u32 {sT[7]}, {sT[7]}, {sT[8]}")
e(f"v_lshlrev_b32 {vL4}, 2, {vLane}")
e("s_waitcnt lgkmcnt(0)")
mk_srd("WQ", 22, 640 * 4096 * 2)
for t in range(20):
    e(f"buffer_load_dword {v(PQ+t)}, {vL4}, {S_WQ}, {sT[7]} offen{WP}")
    if t < 19: e(f"s_add_u32 {sT[7]}, {sT[7]}, 8192")
def ids2():
    e(f"s_lshl_b32 {sP}, {sH}, 2")
    e(f"s_and_b32 {sJ}, {sR}, 3")
    e(f"s_or_b32 {sP}, {sP}, {sJ}")
    e(f"s_lshr_b32 {sB}, {sR}, 2")
ids2()
flags()
e(f"s_mul_i32 {sT[8]}, {sT[5]}, 3456")
e(f"s_lshl_b32 {sT[9]}, {sH}, 7")
e(f"s_add_u32 {sT[8]}, {sT[8]}, {sT[9]}")
e(f"v_lshlrev_b32 {vT0}, 1, {vLane}")
mk_srd("W1", 28, "s12")
for t in range(0, 20, 2):
    e(f"buffer_load_ushort {v(PH+t)}, {vT0}, {S_W1}, {sT[8]} offen{WP}")
    e(f"buffer_load_ushort {v(PH+t+1)}, {vT0}, {S_W1}, {sT[8]} offen offset:3456{WP}")
    if t < 18: e(f"s_add_u32 {sT[8]}, {sT[8]}, 6912")
e(f"s_lshl_b32 s14, {sT[5]}, 1")
e(f"s_lshl_b32 {sT[0]}, {sW}, 2")
e(f"v_mov_b32 v8, {sT[0]}")
e(f"v_mov_b32 v9, 0")
e(f"ds_write_b32 v8, v9 offset:{LDS_CNT}")
e("s_waitcnt lgkmcnt(0)")
e("s_barrier")
stamp("A P issued")
late_srds()
e("s_mov_b64 s[12:13], s[16:17]")
XR = {0: list(range(16, 26)), 1: list(range(28, 36)) + [26, 27]}
e(f"s_load_dwordx8 s[16:23], s[12:13], s14")
e(f"s_load_dwordx2 s[24:25], s[12:13], s14 offset:32")
e(f"s_load_dwordx8 s[28:35], s[12:13], s14 offset:1280")
e(f"s_load_dwordx2 s[26:27], s[12:13], s14 offset:1312")
kv_consts()
lane_consts()
consts()
tr_addr()
for i in range(6):
    e(f"v_mov_b32 {v(PACC+i)}, 0")
e("s_waitcnt vmcnt(0) lgkmcnt(0)")
stamp("P data")
e(f"s_add_u32 {sNonce}, {sNonce}, 0x01010101")
e(f"v_mov_b32 {vNonce}, {sNonce}")
for t in range(20):
    half = t & 1; idx = t >> 1
    for b in range(2):
        r = XR[b][idx]
        if half == 0: e(f"s_lshl_b32 {sT[b]}, s{r}, 16")
        else: e(f"s_and_b32 {sT[b]}, s{r}, 0xffff0000")
    e(f"v_lshlrev_b32 {vT0}, 16, {v(PQ+t)}")
    e(f"v_and_b32 {vT1}, 0xffff0000, {v(PQ+t)}")
    e(f"v_lshlrev_b32 {v(PH+t)}, 16, {v(PH+t)}")
    e(f"v_fmac_f32 {v(PACC+0)}, {sT[0]}, {vT0}")
    e(f"v_fmac_f32 {v(PACC+1)}, {sT[0]}, {vT1}")
    e(f"v_fmac_f32 {v(PACC+2)}, {sT[1]}, {vT0}")
    e(f"v_fmac_f32 {v(PACC+3)}, {sT[1]}, {vT1}")
    e(f"v_fmac_f32 {v(PACC+4)}, {sT[0]}, {v(PH+t)}")
    e(f"v_fmac_f32 {v(PACC+5)}, {sT[1]}, {v(PH+t)}")
e(f"s_mul_i32 {sT[0]}, {sW}, 1536")
e(f"s_add_u32 {sT[0]}, {sT[0]}, {LDS_P}")
e(f"v_lshl_add_u32 {vT0}, {vLane}, 3, {sT[0]}")
e(f"v_add_u32 {vT1}, {sT[0]}, {vL4}")
e(f"ds_write_b64 {vT0}, {vr(PACC,2)}")
e(f"ds_write_b64 {vT0}, {vr(PACC+2,2)} offset:768")
e(f"ds_write_b32 {vT1}, {v(PACC+4)} offset:512")
e(f"ds_write_b32 {vT1}, {v(PACC+5)} offset:{768+512}")
e(f"s_lshl_b32 {sT[0]}, {sW}, 2")
e(f"v_mov_b32 {vT0}, {sT[0]}")
e("s_waitcnt lgkmcnt(0)")
e(f"v_mov_b32 {vT1}, 1")
e(f"ds_write_b32 {vT0}, {vT1} offset:{LDS_CNT}")
e(f"ds_write_b32 {vT0}, {vNonce} offset:{LDS_NONCE}")
dma_scalars()
e(f"s_cmp_ge_u32 {sW}, 2")
e("s_cbranch_scc1 L_nopub")
e(f"s_mov_b32 {sCnt}, 0")
e(f"v_mov_b32 {vT0}, 0")
lab("L_aspin")
e(f"ds_read_b128 {vr(PACC,4)}, {vT0} offset:{LDS_CNT}")
e(f"s_add_u32 {sCnt}, {sCnt}, 1")
e("s_waitcnt lgkmcnt(0)")
e(f"v_and_b32 {v(PACC)}, {v(PACC)}, {v(PACC+1)}")
e(f"v_and_b32 {v(PACC+2)}, {v(PACC+2)}, {v(PACC+3)}")
e(f"v_and_b32 {v(PACC)}, {v(PACC)}, {v(PACC+2)}")
e(f"s_cmp_gt_u32 {sCnt}, 100000")
e("s_cbranch_scc1 L_aok")
e(f"v_cmp_ne_u32 vcc, 1, {v(PACC)}")
e("s_cbranch_vccnz L_aspin")
lab("L_aok")
PS = V0
e(f"s_mul_i32 {sT[0]}, {sW}, 768")
e(f"s_add_u32 {sT[0]}, {sT[0]}, {LDS_P}")
e(f"v_lshl_add_u32 {vT0}, {vLane}, 4, {sT[0]}")
for w in range(4):
    e(f"ds_read_b128 {vr(PS+4*w,4)}, {vT0} offset:{w*1536}")
e(f"s_lshl_b32 {sT[1]}, {sH}, 3")
e(f"s_add_u32 {sT[1]}, {sT[1]}, {sR}")
e(f"s_lshl_b32 {sT[1]}, {sT[1]}, 1")
e(f"s_add_u32 {sT[1]}, {sT[1]}, {sW}")
e(f"s_mul_i32 {sT[1]}, {sT[1]}, {QH_RB}")
e(f"s_add_u32 {sT[1]}, {sT[1]}, {WS_QH}")
e(f"v_lshl_add_u32 {vT1}, {vLane}, 4, {sT[1]}")
e("s_waitcnt lgkmcnt(0)")
for (n, off) in ((2, 8), (1, 4)):
    for i in range(n):
        for k in range(4):
            e(f"v_add_f32 {v(PS+4*i+k)}, {v(PS+4*i+k)}, {v(PS+4*i+k+off)}")
tag4([v(PS+k) for k in range(4)])
e("s_mov_b32 exec_hi, 0xffff")
e(f"buffer_store_dwordx4 {vr(PS,4)}, {vT1}, {S_WS}, 0 offen sc1")
e("s_mov_b32 exec_hi, -1")
lab("L_nopub")
stamp("published")
nA = mix_loads(k_load)
stamp("A mix issued")
QD = WO0 + 60
QT = 246
e(f"v_mov_b32 {v(QT)}, 0")
e(f"v_mov_b32 {v(QT+1)}, 0")
e(f"v_mov_b32 {v(QT+6)}, 0")
e(f"s_cmp_eq_u32 {sW}, 0")
e("s_cbranch_scc0 L_noq")
e(f"s_lshl_b32 {sT[0]}, {sH}, 4")
e(f"s_add_u32 {sT[0]}, {sT[0]}, {sB}")
e(f"s_mul_i32 {sT[0]}, {sT[0]}, {QH_RB}")
e(f"s_add_u32 {sT[0]}, {sT[0]}, {WS_QH}")
e(f"v_lshrrev_b32 {vT0}, 5, {vLane}")
e(f"v_mul_u32_u24 {vT0}, {2*QH_RB}, {vT0}")
e(f"v_and_b32 {vT1}, 31, {vLane}")
e(f"v_lshl_add_u32 {vT0}, {vT1}, 4, {vT0}")
e(f"v_add_u32 {v(QT)}, {sT[0]}, {vT0}")
e(f"v_bfe_u32 {vT0}, {vLane}, 2, 3")
e(f"v_mul_u32_u24 {vT0}, {2*QH_RB}, {vT0}")
e(f"v_and_b32 {vT1}, 3, {vLane}")
e(f"v_lshl_add_u32 {vT0}, {vT1}, 4, {vT0}")
e(f"s_lshl_b32 {sT[1]}, {sJ}, 6")
e(f"s_add_u32 {sT[1]}, {sT[1]}, {sT[0]}")
e(f"s_add_u32 {sT[1]}, {sT[1]}, 512")
e(f"v_add_u32 {v(QT+1)}, {sT[1]}, {vT0}")
e(f"s_mov_b32 {sCnt}, 0")
stamp("poll addr")
e(f"v_add_u32 {v(QT+6)}, {8*QH_RB}, {v(QT)}")
lab("L_qpoll")
for u in range(4):
    e(f"buffer_load_dwordx4 {vr(QD+4*u,4)}, {v(QT) if u < 2 else v(QT+6)}, {S_WS}, 0 offen offset:{(u&1)*4*QH_RB} {a.qpol}")
e(f"buffer_load_dwordx4 {vr(QD+16,4)}, {v(QT+1)}, {S_WS}, 0 offen {a.qpol}")

e("s_waitcnt vmcnt(0)")

check4(QD, v(QT+2), v(QT+3), "vcc")
for u in range(1, 5):
    check4(QD+4*u, v(QT+2), v(QT+3), f"s[12:13]")
    nop(1)
    e("s_or_b64 vcc, vcc, s[12:13]")
nop(1)
e("s_cbranch_vccz L_qok")
e(f"s_add_u32 {sCnt}, {sCnt}, 1")
e(f"s_cmp_gt_u32 {sCnt}, 20000")
e("s_cbranch_scc1 L_qok")
e("s_sleep 2")
e("s_branch L_qpoll")
lab("L_qok")
for k in range(20): e(f"v_and_b32 {v(QD+k)}, 0xffffff00, {v(QD+k)}")
for u in range(1, 4):
    for k in range(4):
        e(f"v_add_f32 {v(QD+k)}, {v(QD+k)}, {v(QD+4*u+k)}")
nop(2)
e(f"v_permlane32_swap_b32 {v(QD)}, {v(QD+2)}")
e(f"v_permlane32_swap_b32 {v(QD+1)}, {v(QD+3)}")
nop(1)
e(f"v_add_f32 {v(QD)}, {v(QD)}, {v(QD+2)}")
e(f"v_add_f32 {v(QD+1)}, {v(QD+1)}, {v(QD+3)}")
e(f"v_and_b32 {vT0}, 31, {vLane}")
e(f"v_lshrrev_b32 {vT1}, 5, {vLane}")
e(f"v_lshlrev_b32 {vT1}, 2, {vT1}")
e(f"v_lshl_add_u32 {vT0}, {vT0}, 3, {vT1}")
e(f"v_cvt_pk_bf16_f32 {v(QD)}, {v(QD)}, {v(QD+1)}")
e(f"ds_write_b32 {vT0}, {v(QD)} offset:{LDS_Q}")
HD = QD + 16
for ctl in ("row_ror:4", "row_ror:8"):
    for k in range(4):
        e(f"v_add_f32_dpp {v(HD+k)}, {v(HD+k)}, {v(HD+k)} {ctl} row_mask:0xf bank_mask:0xf")
for k in range(4): e(f"v_mov_b32 {v(QT+2+k)}, {v(HD+k)}")
nop(1)
for k in range(4): e(f"v_permlane16_swap_b32 {v(HD+k)}, {v(QT+2+k)}")
nop(1)
for k in range(4): e(f"v_add_f32 {v(HD+k)}, {v(HD+k)}, {v(QT+2+k)}")
for k in range(4): e(f"v_mul_f32 {v(QT+2+k)}, 0xbfb8aa3b, {v(HD+k)}")
for k in range(4): e(f"v_exp_f32 {v(QT+2+k)}, {v(QT+2+k)}")
for k in range(4): e(f"v_add_f32 {v(QT+2+k)}, 1.0, {v(QT+2+k)}")
for k in range(4): e(f"v_rcp_f32 {v(QT+2+k)}, {v(QT+2+k)}")
for k in range(4): e(f"v_mul_f32 {v(HD+k)}, {v(HD+k)}, {v(QT+2+k)}")
e(f"v_cvt_pk_bf16_f32 {v(HD)}, {v(HD)}, {v(HD+1)}")
e(f"v_cvt_pk_bf16_f32 {v(HD+1)}, {v(HD+2)}, {v(HD+3)}")
e(f"v_and_b32 {vT0}, 3, {vLane}")
e(f"v_lshlrev_b32 {vT0}, 3, {vT0}")
e(f"ds_write_b64 {vT0}, {vr(HD,2)} offset:{LDS_H}")
stamp("q ready")
stampval("q retries", sCnt)
lab("L_noq")
e(f"s_waitcnt vmcnt({nA}) lgkmcnt(0)")
e("s_barrier")
stamp("Ra A")
for t in range(8): v_load(t)
e("s_branch L_J2")
lab("L_B0")
e(f"v_lshlrev_b32 {vL4}, 2, {vLane}")
ids2()
flags()
e(f"s_cmp_eq_u32 {sW}, 7")
e(f"s_cselect_b32 {sT[0]}, {sIsRed}, 0")
e(f"s_cmp_eq_u32 {sT[0]}, 0")
e("s_cbranch_scc1 L_nogate_ld")
e(f"s_mul_i32 {sT[0]}, {sB}, 1280")
e(f"v_add_u32 {vT1}, {sT[0]}, {vL4}")
for u in range(5):
    e(f"global_load_dword {v(PG+u)}, {vT1}, s[16:17] offset:{u*256}")
for u in range(5):
    e(f"global_load_dword {v(PG+5+u)}, {vL4}, s[32:33] offset:{u*256}")
lab("L_nogate_ld")
e("s_barrier")
late_srds(skipk=True)
if a.tlbwarm:
    e(f"s_mul_i32 {sT[4]}, {sH}, 163840")
    e(f"s_add_u32 {sT[5]}, {sT[4]}, {163840 - 64}")
    e(f"s_mul_i32 {sT[6]}, {sP}, {16*1280}")
    e(f"v_mov_b32 v8, 0")
    e(f"buffer_load_dword v{V0}, {vKV}, {S_V}, {sKO[0]} offen{KVP}")
    e(f"buffer_load_dword v{V0+1}, v8, {S_WO}, {sT[4]} offen{WP}")
    e(f"buffer_load_dword v{V0+2}, v8, {S_WO}, {sT[5]} offen{WP}")
    e(f"buffer_load_dword v{V0+3}, v8, {S_W2}, {sT[6]} offen{WP}")
    e(f"buffer_load_dword v{V0+4}, v8, {S_WS}, 0 offen offset:{WS_EPOCH+128} sc1")
lane_consts()
dma_scalars()
consts()
tr_addr()
nB = mix_loads(k_load, a.kfirst, a.dperb)
stamp("B mix issued")
for t in range(16): v_load(t)
stamp("B V issued")
e(f"s_cmp_eq_u32 {sW}, 7")
e(f"s_cselect_b32 {sT[0]}, {sIsRed}, 0")
e(f"s_cmp_eq_u32 {sT[0]}, 0")
e("s_cbranch_scc1 L_nogate")
e(f"s_waitcnt vmcnt({50 - a.kfirst + (5 if a.tlbwarm else 0)})")
e(f"v_dot2_f32_bf16 {vT0}, {v(PG)}, {v(PG+5)}, 0")
for u in range(1, 5):
    e(f"v_dot2_f32_bf16 {vT0}, {v(PG+u)}, {v(PG+5+u)}, {vT0}")
nop(3)
for ctl in ("quad_perm:[1,0,3,2]", "quad_perm:[2,3,0,1]", "row_ror:4", "row_ror:8"):
    e(f"v_add_f32_dpp {vT0}, {vT0}, {vT0} {ctl} row_mask:0xf bank_mask:0xf")
    nop(2)
for sw in ("v_permlane16_swap_b32", "v_permlane32_swap_b32"):
    e(f"v_mov_b32 {vT1}, {vT0}")
    nop(2)
    e(f"{sw} {vT0}, {vT1}")
    nop(1)
    e(f"v_add_f32 {vT0}, {vT0}, {vT1}")
e(f"v_mul_f32 {vT0}, 0xbfb8aa3b, {vT0}")
e(f"v_exp_f32 {vT0}, {vT0}")
nop(1)
e(f"v_add_f32 {vT0}, 1.0, {vT0}")
e(f"v_rcp_f32 {vT0}, {vT0}")
e(f"v_mov_b32 {vT1}, {LDS_G}")
nop(1)
e(f"ds_write_b32 {vT1}, {vT0}")
lab("L_nogate")
e(f"s_waitcnt vmcnt({16 + nB}) lgkmcnt(0)")
e("s_barrier")
e(f"v_mov_b32 {vT0}, 0")
e(f"ds_read_b32 {vNonce}, {vT0} offset:{LDS_NONCE}")
stamp("Ra B")
lab("L_J2")
def tr_reads(pairs):
    for (ks, slot) in pairs:
        for t in range(5):
            r = WO0 + (ks*5 + t)*4
            base, off = vTR[t], slot*40960
            if off + 5120 > 65535:
                base, off = v(240+t), 0
            e(f"ds_read_b64_tr_b16 {vr(r,2)}, {base} offset:{off}")
            e(f"ds_read_b64_tr_b16 {vr(r+2,2)}, {base} offset:{off + 5120}")
for t in range(5):
    e(f"v_add_u32 {v(240+t)}, {2*40960}, {vTR[t]}")
tr_reads([(0, 0), (1, 1), (2, 2)])
e(f"v_lshrrev_b32 {vT1}, 4, {vLane}")
e(f"v_mul_u32_u24 {vT1}, 5120, {vT1}")
e(f"v_add_u32 {vT1}, {LDS_WO - LDS_W2}, {vT1}")
for t in range(5):
    e(f"v_sub_u32 {v(240+t)}, {vTR[t]}, {vT1}")
for t in range(5):
    e(f"ds_read_b64_tr_b16 {vr(W20+2*t,2)}, {v(240+t)}")
e(f"v_and_b32 {vT0}, 15, {vLane}")
e(f"v_lshlrev_b32 {vT0}, 4, {vT0}")
e(f"ds_read_b128 {vr(vQ,4)}, {vT0} offset:{LDS_Q}")
e(f"v_lshrrev_b32 {vT1}, 4, {vLane}")
e(f"v_lshlrev_b32 {vT1}, 3, {vT1}")
e(f"ds_read_b64 {vr(vHop,2)}, {vT1} offset:{LDS_H}")
e("s_waitcnt lgkmcnt(0)")
e("s_barrier")
stamp("Rb")
KS = lambda t: K0 + 4*t
S = [KS(t) for t in range(4)]
vM, vLs = "v17", "v18"
def allred(reg, op, tmp, rows=True, quads=False):
    if quads:
        for ctl in ("quad_perm:[1,0,3,2]", "quad_perm:[2,3,0,1]"):
            e(f"{op}_dpp {reg}, {reg}, {reg} {ctl} row_mask:0xf bank_mask:0xf"); nop(2)
    for ctl in ("row_ror:4", "row_ror:8"):
        e(f"{op}_dpp {reg}, {reg}, {reg} {ctl} row_mask:0xf bank_mask:0xf"); nop(2)
    if rows:
        for sw in ("v_permlane16_swap_b32", "v_permlane32_swap_b32"):
            e(f"v_mov_b32 {tmp}, {reg}"); nop(2)
            e(f"{sw} {reg}, {tmp}"); nop(1)
            e(f"{op} {reg}, {reg}, {tmp}")
def qk_softmax():
    cm("QK^T")
    for i in range(4):
        for t in range(16):
            c = "0" if i == 0 else v(KS(t))
            e(f"v_dot2_f32_bf16 {v(KS(t))}, {v(KS(t)+i)}, {v(vQ+i)}, {c}")
    cm("16-lane reduce-scatter of the scores")
    for t in range(8):
        e(f"v_add_f32_dpp {v(KS(t))}, {v(KS(t))}, {v(KS(t))} row_ror:8 row_mask:0xf bank_mask:0x3")
    for t in range(8):
        e(f"v_add_f32_dpp {v(KS(t))}, {v(KS(t+8))}, {v(KS(t+8))} row_ror:8 row_mask:0xf bank_mask:0xc")
    for t in range(4):
        e(f"v_add_f32_dpp {v(KS(t))}, {v(KS(t))}, {v(KS(t))} row_half_mirror row_mask:0xf bank_mask:0x5")
    for t in range(4):
        e(f"v_add_f32_dpp {v(KS(t))}, {v(KS(t+4))}, {v(KS(t+4))} row_half_mirror row_mask:0xf bank_mask:0xa")
    for ctl in ("quad_perm:[1,0,3,2]", "quad_perm:[2,3,0,1]"):
        for t in range(4):
            e(f"v_add_f32_dpp {v(KS(t))}, {v(KS(t))}, {v(KS(t))} {ctl} row_mask:0xf bank_mask:0xf")
    cm("softmax over the wave's 64 keys")
    e(f"v_max3_f32 {vT0}, {v(S[0])}, {v(S[1])}, {v(S[2])}")
    e(f"v_max_f32 {vT0}, {vT0}, {v(S[3])}")
    nop(2)
    allred(vT0, "v_max_f32", vT1)
    e(f"v_mul_f32 {vM}, {sC}, {vT0}")
    for t in range(4):
        e(f"v_fma_f32 {v(S[t])}, {v(S[t])}, {sC}, -{vM}")
    for t in range(4):
        e(f"v_exp_f32 {v(S[t])}, {v(S[t])}")
    nop(1)
    e(f"v_cvt_pk_bf16_f32 {vP01}, {v(S[0])}, {v(S[1])}")
    e(f"v_cvt_pk_bf16_f32 {vP23}, {v(S[2])}, {v(S[3])}")
    e(f"v_add_f32 {vLs}, {v(S[0])}, {v(S[1])}")
    e(f"v_add_f32 {vT0}, {v(S[2])}, {v(S[3])}")
    e(f"v_add_f32 {vLs}, {vLs}, {vT0}")
    nop(2)
    allred(vLs, "v_add_f32", vT1)
    e(f"s_lshl_b32 {sT[0]}, {sW}, 2")
    e(f"v_mov_b32 {vT0}, {sT[0]}")
    e(f"ds_write_b32 {vT0}, {vM} offset:{LDS_M}")
    e(f"ds_write_b32 {vT0}, {vLs} offset:{LDS_L}")
def publish(R0, R4, a0, a4, extra_off, tmpb):
    G0 = tmpb; G4 = tmpb + 4
    for k in range(4):
        e(f"v_mov_b32_dpp {v(G0+k)}, {R0} quad_perm:[{k},{k},{k},{k}] row_mask:0xf bank_mask:0xf")
    for k in range(4):
        e(f"v_mov_b32_dpp {v(G4+k)}, {R4} quad_perm:[{k},{k},{k},{k}] row_mask:0xf bank_mask:0xf")
    tag4([v(G0+k) for k in range(4)])
    tag4([v(G4+k) for k in range(4)])
    e("s_mov_b32 exec_lo, 0x11111111")
    e("s_mov_b32 exec_hi, 0x11111111")
    e(f"buffer_store_dwordx4 {vr(G0,4)}, {a0}, {S_WS}, {extra_off} offen sc1")
    e("s_mov_b32 exec_lo, 0x1111")
    e("s_mov_b32 exec_hi, 0")
    e(f"buffer_store_dwordx4 {vr(G4,4)}, {a4}, {S_WS}, {extra_off} offen sc1")
    e("s_mov_b64 exec, -1")
FD = 32
PUB = 52
sAttOff, sFfnOff = sT[3], sT[2]
def pub_addr():
    e(f"s_mul_i32 {sT[0]}, {sB}, 40")
    e(f"s_mul_i32 {sT[1]}, {sW}, 5")
    e(f"s_add_u32 {sT[0]}, {sT[0]}, {sT[1]}")
    e(f"s_lshl_b32 {sT[0]}, {sT[0]}, 7")
    e(f"s_add_u32 {sT[0]}, {sT[0]}, {sP}")
    e(f"s_lshl_b32 {sT[0]}, {sT[0]}, 6")
    e(f"v_lshrrev_b32 {vT0}, 4, {vLane}")
    e(f"v_lshlrev_b32 {vT0}, 13, {vT0}")
    e(f"v_bfe_u32 {vT1}, {vLane}, 2, 2")
    e(f"v_lshlrev_b32 {vT1}, 4, {vT1}")
    e(f"v_add3_u32 {v(PUB+8)}, {vT0}, {vT1}, {sT[0]}")
    e(f"s_add_u32 {sT[0]}, {sT[0]}, {4*8192}")
    e(f"v_add_u32 {v(PUB+9)}, {sT[0]}, {vT1}")
    e(f"v_add_u32 {v(PUB+10)}, {sOOB}, {v(PUB+8)}")
    e(f"v_add_u32 {v(PUB+11)}, {sOOB}, {v(PUB+9)}")
    e(f"s_mov_b32 {sFfnOff}, {WS_FFN}")
    e(f"s_mov_b32 {sAttOff}, {WS_ATT}")
def ffn_block():
    cm("FFN second projection: 5 tiles, K=16")
    for t in range(5):
        e(f"v_mfma_f32_16x16x16_bf16 {vr(FD+4*t,4)}, {vr(vHop,2)}, {vr(W20+2*t,2)}, 0")
    pub_addr()
    nop(2)
    FR0 = "v19"
    e(f"v_mov_b32 {FR0}, {v(FD)}")
    for g in range(1, 4):
        e(f"v_mov_b32_dpp {FR0}, {v(FD+4*g)} quad_perm:[0,1,2,3] row_mask:{1<<g:#x} bank_mask:0xf")
    nop(2)
    publish(FR0, v(FD+16), v(PUB+10), v(PUB+11), sFfnOff, PUB)
def pv_block(younger, nda=0):
    cm("PV")
    for i in range(8): e(f"v_mov_b32 {v(vAcc+i)}, 0")
    for pr in range(8):
        s0, s1 = 2*pr, 2*pr + 1
        extra = 0
        if nda:
            pos = {1: [12], 2: [11, 13], 3: [10, 12, 14], 4: [10, 11, 13, 14], 5: [9, 10, 12, 13, 14]}[nda]
            extra = sum(1 for p in pos if p >= s1)
        e(f"s_waitcnt vmcnt({15 - s1 + younger + extra})")
        A = V0 + 4*s0; B = V0 + 4*s1
        for i in range(4):
            e(f"v_perm_b32 {v(vPT+2*i)}, {v(B+i)}, {v(A+i)}, {sPLo}")
            e(f"v_perm_b32 {v(vPT+2*i+1)}, {v(B+i)}, {v(A+i)}, {sPHi}")
        P = vP01 if (s0 & 3) == 0 else vP23
        for i in range(8):
            e(f"v_dot2c_f32_bf16_dpp {v(vAcc+i)}, {P}, {v(vPT+i)} row_newbcast:{4*(s0>>2)} row_mask:0xf bank_mask:0xf")
    e(f"s_mul_i32 {sT[0]}, {sW}, {O_STRIDE}")
    e(f"v_and_b32 {vT0}, 15, {vLane}")
    e(f"v_lshrrev_b32 {vT1}, 4, {vLane}")
    for i in range(4): e(f"v_permlane32_swap_b32 {v(vAcc+i)}, {v(vAcc+4+i)}")
    e(f"v_lshlrev_b32 {vT1}, 2, {vT1}")
    for i in range(4): e(f"v_add_f32 {v(vAcc+i)}, {v(vAcc+i)}, {v(vAcc+4+i)}")
    e(f"v_lshl_add_u32 {vT0}, {vT0}, 4, {vT1}")
    e(f"v_add_u32 {vT0}, {sT[0]}, {vT0}")
    e(f"v_permlane16_swap_b32 {v(vAcc)}, {v(vAcc+2)}")
    e(f"v_permlane16_swap_b32 {v(vAcc+1)}, {v(vAcc+3)}")
    nop(1)
    e(f"v_add_f32 {v(vAcc)}, {v(vAcc)}, {v(vAcc+2)}")
    e(f"v_add_f32 {v(vAcc+1)}, {v(vAcc+1)}, {v(vAcc+3)}")
    e(f"v_cvt_pk_bf16_f32 {v(vAcc)}, {v(vAcc)}, {v(vAcc+1)}")
    e(f"ds_write_b32 {vT0}, {v(vAcc)} offset:{LDS_O}")
RF, RM, RA = 80, 88, 96
vRA, vRM, vRW, vRG = "v104", "v105", 106, "v110"
sRedOn = sT[8]
mLo, mHi = "s[20:21]", "s[22:23]"
def red_loads_fm(masked=False):
    if masked: e(f"s_mov_b64 exec, {mLo}")
    e(f"buffer_load_dwordx4 {vr(RF,4)}, {vRA}, {S_WS}, {sFfnOff} offen sc1")
    e(f"buffer_load_dwordx4 {vr(RM,4)}, {vRM}, {S_WS}, 0 offen sc1")
    if masked: e(f"s_mov_b64 exec, {mHi}")
    e(f"buffer_load_dwordx4 {vr(RF+4,4)}, {vRA}, {S_WS}, {sFfnOff} offen offset:1024 sc1")
    e(f"buffer_load_dwordx4 {vr(RM+4,4)}, {vRM}, {S_WS}, 0 offen offset:1024 sc1")
    if masked: e("s_mov_b64 exec, -1")
def red_loads_a(masked=False):
    if masked: e(f"s_mov_b64 exec, {mLo}")
    e(f"buffer_load_dwordx4 {vr(RA,4)}, {vRA}, {S_WS}, {sAttOff} offen sc1")
    if masked: e(f"s_mov_b64 exec, {mHi}")
    e(f"buffer_load_dwordx4 {vr(RA+4,4)}, {vRA}, {S_WS}, {sAttOff} offen offset:1024 sc1")
    if masked: e("s_mov_b64 exec, -1")

def ml_publish(wave, skip):
    e(f"s_cmp_eq_u32 {sW}, {wave}")
    e(f"s_cbranch_scc0 {skip}")
    MLR = 80
    e("v_mov_b32 v96, 0")
    e(f"ds_read_b128 {vr(MLR,4)}, v96 offset:{LDS_M}")
    e(f"ds_read_b128 {vr(MLR+4,4)}, v96 offset:{LDS_M+16}")
    e(f"ds_read_b128 {vr(MLR+8,4)}, v96 offset:{LDS_L}")
    e(f"ds_read_b128 {vr(MLR+12,4)}, v96 offset:{LDS_L+16}")
    e(f"s_lshl_b32 {sT[0]}, {sB}, 7")
    e(f"s_add_u32 {sT[0]}, {sT[0]}, {sP}")
    e(f"s_lshl_b32 {sT[0]}, {sT[0]}, 4")
    e(f"s_add_u32 {sT[0]}, {sT[0]}, {WS_ML}")
    e("s_waitcnt lgkmcnt(0)")
    for r in range(8): e(f"v_sub_f32 {v(MLR+r)}, {v(MLR+r)}, {v(MA)}")
    for r in range(8): e(f"v_exp_f32 {v(MLR+r)}, {v(MLR+r)}")
    e(f"v_mul_f32 v97, {v(MLR)}, {v(MLR+8)}")
    for r in range(1, 8): e(f"v_fmac_f32 v97, {v(MLR+r)}, {v(MLR+8+r)}")
    e(f"v_mov_b32 {v(MLR)}, {v(MA)}")
    e(f"v_mov_b32 {v(MLR+1)}, v97")
    e(f"v_mov_b32 {v(MLR+2)}, {vNonce}")
    e(f"v_mov_b32 {v(MLR+3)}, {vNonce}")
    e(f"v_mov_b32 v96, {sT[0]}")
    e("s_mov_b64 exec, 1")
    e(f"buffer_store_dwordx4 {vr(MLR,4)}, v96, {S_WS}, 0 offen sc1")
    e("s_mov_b64 exec, -1")
    stamp("ML pub")
MA = 16

e(f"s_cmp_ge_u32 {sW}, 4")
e("s_cbranch_scc1 L_B3")
def d3(i):
    hv, u = divmod(i, 5)
    e(f"s_add_u32 m0, {sT[6]}, {LDS_WO + hv*4*5120 + u*1024}")
    e("s_nop 0")
    e(f"buffer_load_dwordx4 {vDM[u]}, {S_WO}, {sT[5] if hv == 0 else sT[7]} offen{WP} lds")
def d3_scalars():
    e(f"s_and_b32 {sT[6]}, {sW}, 3")
    e(f"s_mul_i32 {sT[6]}, {sT[6]}, 5120")
    e(f"s_mul_i32 {sT[5]}, {sH}, 163840")
    e(f"s_add_u32 {sT[5]}, {sT[5]}, {sT[6]}")
    e(f"s_add_u32 {sT[5]}, {sT[5]}, {3*40960}")
    e(f"s_add_u32 {sT[7]}, {sT[5]}, {4*5120}")
if a.r2by == "A":
    d3_scalars()
    for t in range(8, 16): v_load(t)
    for i in range(10): d3(i)
    e("s_waitcnt vmcnt(26)")
else:
    d3_scalars()
    pos = {1: [12], 2: [11, 13], 3: [10, 12, 14], 4: [10, 11, 13, 14], 5: [9, 10, 12, 13, 14], 0: []}[a.nda]
    di = 0
    for t in range(8, 16):
        v_load(t)
        if t in pos:
            d3(di); di += 1
    e(f"s_waitcnt vmcnt({16 + a.nda})")
stamp("A V issued")
qk_softmax()
stamp("A softmax")
ffn_block()
stamp("A ffn pub")
pv_block(12 if a.r2by == "A" else 2, a.nda if a.r2by == "B" else 0)
stamp("A PV done")
if a.prio: e(f"s_setprio {a.prio}")
e("s_branch L_J4")
lab("L_B3")
e("s_waitcnt vmcnt(16)")
qk_softmax()
stamp("B softmax")
pv_block(0)
stamp("B PV done")
def b_stage():
    d3_scalars()
    for i in range(a.nda, 10): d3(i)
    stamp("B r2 issued")
if a.bord == "DF": b_stage()
ffn_block()
stamp("B ffn pub")
if a.bord == "FD": b_stage()
lab("L_J4")
e(f"v_and_b32 {vT0}, 15, {vLane}")
e(f"v_mul_u32_u24 {vT0}, {O_STRIDE}, {vT0}")
e(f"v_lshrrev_b32 {vT1}, 4, {vLane}")
e(f"v_lshl_add_u32 {vT0}, {vT1}, 4, {vT0}")
e(f"v_and_b32 {vT1}, 1, {vT1}")
e(f"v_lshlrev_b32 {vT1}, 4, {vT1}")
e("v_mov_b32 v8, 0")
e("s_waitcnt lgkmcnt(0)")
e("s_barrier")
stamp("O barrier")
OA = 64
DA = 32
for s_ in range(4):
    e(f"ds_read_b128 {vr(OA+4*s_,4)}, {vT0} offset:{LDS_O + s_*64}")
e(f"ds_read_b128 {vr(MA,4)}, v8 offset:{LDS_M}")
e(f"ds_read_b128 {vr(MA+4,4)}, v8 offset:{LDS_M+16}")
e(f"ds_read_b128 {vr(MA+8,4)}, {vT1} offset:{LDS_M}")
if not a.r2last: tr_reads([(3, 0)])
nl = 7 if a.r2last else 17
for s_ in range(4):
    if s_ == 3:
        ml_publish(a.mlwave, "L_noml")
        lab("L_noml")
    if s_ == 3 and a.r2last:
        assert a.r2by == "B" and a.nda == 0
        e(f"s_cmp_ge_u32 {sW}, 4")
        e("s_cbranch_scc0 L_noDwait")
        e(f"s_waitcnt vmcnt({2 if a.bord == 'DF' else 0})")
        lab("L_noDwait")
        e("s_barrier")
        stamp("Rc")
        tr_reads([(3, 0)])
        e("s_waitcnt lgkmcnt(0)")
    if s_ < 3: e(f"s_waitcnt lgkmcnt({min(15, nl - 1 - s_)})")
    for t in range(5):
        c = "0" if s_ == 0 else vr(DA+4*t,4)
        e(f"v_mfma_f32_16x16x32_bf16 {vr(DA+4*t,4)}, {vr(OA+4*s_,4)}, {vr(WO0+(s_*5+t)*4,4)}, {c}")
    if s_ == 1:
        e(f"s_waitcnt lgkmcnt({nl - 7})")
        e(f"v_max3_f32 {v(MA)}, {v(MA)}, {v(MA+1)}, {v(MA+2)}")
        e(f"v_max3_f32 {v(MA+3)}, {v(MA+3)}, {v(MA+4)}, {v(MA+5)}")
        e(f"v_max3_f32 {v(MA)}, {v(MA)}, {v(MA+6)}, {v(MA+7)}")
        e(f"v_max_f32 {v(MA)}, {v(MA)}, {v(MA+3)}")
    if s_ == 2:
        for r in range(4): e(f"v_sub_f32 {v(MA+8+r)}, {v(MA+8+r)}, {v(MA)}")
        for r in range(4): e(f"v_exp_f32 {v(MA+8+r)}, {v(MA+8+r)}")
        if not a.r2last: e("s_waitcnt lgkmcnt(0)")
nop(4)
T = [DA+4*t for t in range(5)]
for t in range(5):
    e(f"v_mul_f32 {v(T[t])}, {v(T[t])}, {v(MA+8)}")
for r in range(1, 4):
    for t in range(5):
        e(f"v_fmac_f32 {v(T[t])}, {v(T[t]+r)}, {v(MA+8+r)}")
e(f"v_mov_b32 {v(T[4]+1)}, {v(T[4])}")
e(f"v_permlane32_swap_b32 {v(T[0])}, {v(T[2])}")
e(f"v_permlane32_swap_b32 {v(T[1])}, {v(T[3])}")
e(f"v_permlane16_swap_b32 {v(T[4])}, {v(T[4]+1)}")
e(f"v_add_f32 {v(T[0])}, {v(T[0])}, {v(T[2])}")
e(f"v_add_f32 {v(T[1])}, {v(T[1])}, {v(T[3])}")
e(f"v_add_f32 {v(T[4])}, {v(T[4])}, {v(T[4]+1)}")
nop(1)
e(f"v_permlane16_swap_b32 {v(T[0])}, {v(T[1])}")
nop(1)
e(f"v_add_f32 {v(T[0])}, {v(T[0])}, {v(T[1])}")
nop(2)
publish(v(T[0]), v(T[4]), v(PUB+8), v(PUB+9), sAttOff, PUB)
stamp("att pub")
e(f"s_cmp_eq_u32 {sIsRed}, 0")
e("s_cbranch_scc1 L_fin")
RA, RF, RM = 64, 68, 72
e(f"s_and_b32 {sT[0]}, s2, 127")
e(f"s_mul_i32 {sT[1]}, {sB}, 40")
e(f"s_add_u32 {sT[1]}, {sT[1]}, {sT[0]}")
e(f"s_lshl_b32 {sT[1]}, {sT[1]}, 13")
e(f"s_lshl_b32 {sT[2]}, {sW}, 10")
e(f"s_add_u32 {sT[1]}, {sT[1]}, {sT[2]}")
e(f"v_lshl_add_u32 v76, {vLane}, 4, {sT[1]}")
e(f"s_lshl_b32 {sT[2]}, {sB}, 11")
e(f"s_lshl_b32 {sT[3]}, {sW}, 8")
e(f"s_add_u32 {sT[2]}, {sT[2]}, {sT[3]}")
e(f"s_add_u32 {sT[2]}, {sT[2]}, {WS_ML}")
e(f"v_lshrrev_b32 {vT0}, 2, {vLane}")
e(f"v_lshl_add_u32 v77, {vT0}, 4, {sT[2]}")
e(f"s_mov_b32 {sT[4]}, {WS_ATT}")
e(f"s_mov_b32 {sT[5]}, {WS_FFN}")
e(f"s_lshl_b32 {sT[6]}, {sW}, 4")
e(f"v_add_u32 {vT0}, {sT[6]}, {vT0}")
e(f"s_movk_i32 {sT[7]}, 108")
e(f"v_cmp_gt_u32 s[14:15], {sT[7]}, {vT0}")
e(f"s_mov_b32 {sCnt}, 0")
lab("L_rpoll1")
e(f"buffer_load_dwordx4 {vr(RF,4)}, v76, {S_WS}, {sT[5]} offen sc1")
e(f"buffer_load_dwordx4 {vr(RM,4)}, v77, {S_WS}, 0 offen sc1")
e(f"buffer_load_dwordx4 {vr(RA,4)}, v76, {S_WS}, {sT[4]} offen sc1")
e("s_waitcnt vmcnt(1)")
check4(RF, vT0, vT1, "vcc")
e(f"v_cmp_ne_u32 s[12:13], {v(RM+2)}, {vNonce}")
nop(1)
e("s_and_b64 vcc, vcc, s[14:15]")
e("s_or_b64 vcc, vcc, s[12:13]")
nop(1)
e("s_cbranch_vccz L_rok1")
e(f"s_add_u32 {sCnt}, {sCnt}, 1")
e(f"s_cmp_gt_u32 {sCnt}, 20000")
e("s_cbranch_scc1 L_rok1")
e("s_waitcnt vmcnt(0)")
e(f"s_sleep {a.sleep}")
e("s_branch L_rpoll1")
lab("L_rok1")
e(f"v_mov_b32 {vT0}, {LDS_G}")
e(f"ds_read_b32 v78, {vT0}")
e(f"v_mov_b32 {vT1}, {v(RM)}")
nop(1)
for ctl in ("row_ror:4", "row_ror:8"):
    e(f"v_max_f32_dpp {vT1}, {vT1}, {vT1} {ctl} row_mask:0xf bank_mask:0xf")
    nop(2)
e(f"v_sub_f32 {v(RM)}, {v(RM)}, {vT1}")
e(f"v_exp_f32 {v(RM)}, {v(RM)}")
nop(1)
e(f"v_mul_f32 {v(RM+1)}, {v(RM+1)}, {v(RM)}")
nop(2)
for ctl in ("row_ror:4", "row_ror:8"):
    e(f"v_add_f32_dpp {v(RM+1)}, {v(RM+1)}, {v(RM+1)} {ctl} row_mask:0xf bank_mask:0xf")
    nop(2)
e(f"v_rcp_f32 {v(RM+1)}, {v(RM+1)}")
e("s_waitcnt lgkmcnt(0)")
e(f"v_mul_f32 {v(RM)}, {v(RM)}, v78")
e(f"v_sub_f32 v78, 1.0, v78")
e(f"v_mul_f32 {v(RM)}, {v(RM)}, {v(RM+1)}")
for k in range(4):
    e(f"v_and_b32 {v(RF+k)}, 0xffffff00, {v(RF+k)}")
for k in range(4):
    e(f"v_cndmask_b32 {v(RF+k)}, 0, {v(RF+k)}, s[14:15]")
for k in range(4):
    e(f"v_mul_f32 {v(RF+k)}, v78, {v(RF+k)}")
e(f"s_mov_b32 {sCnt}, 0")
for _ in range(a.depth - 1):
    e(f"buffer_load_dwordx4 {vr(RA,4)}, v76, {S_WS}, {sT[4]} offen sc1")
lab("L_rpoll2")
e(f"s_waitcnt vmcnt({a.depth - 1})")
check4(RA, vT0, vT1, "s[20:21]")
nop(1)
e("s_or_b64 s[12:13], s[20:21], s[20:21]")
e("s_cbranch_scc0 L_rok2")
e(f"s_add_u32 {sCnt}, {sCnt}, 1")
e(f"s_cmp_gt_u32 {sCnt}, 40000")
e("s_cbranch_scc1 L_rok2")
if a.sleep: e(f"s_sleep {a.sleep}")
if a.mask: e("s_mov_b64 exec, s[20:21]")
e(f"buffer_load_dwordx4 {vr(RA,4)}, v76, {S_WS}, {sT[4]} offen sc1")
if a.mask: e("s_mov_b64 exec, -1")
e("s_branch L_rpoll2")
lab("L_rok2")
stamp("polled")
stampval("final retries", sCnt)
for k in range(4):
    e(f"v_and_b32 {v(84+k)}, 0xffffff00, {v(RA+k)}")
for k in range(4):
    e(f"v_fmac_f32 {v(RF+k)}, {v(RM)}, {v(84+k)}")
nop(1)
for ctl in ("row_ror:4", "row_ror:8"):
    for k in range(4):
        e(f"v_add_f32_dpp {v(RF+k)}, {v(RF+k)}, {v(RF+k)} {ctl} row_mask:0xf bank_mask:0xf")
nop(1)
e(f"v_permlane32_swap_b32 {v(RF)}, {v(RF+2)}")
e(f"v_permlane32_swap_b32 {v(RF+1)}, {v(RF+3)}")
nop(1)
e(f"v_add_f32 {v(RF)}, {v(RF)}, {v(RF+2)}")
e(f"v_add_f32 {v(RF+1)}, {v(RF+1)}, {v(RF+3)}")
nop(1)
e(f"v_permlane16_swap_b32 {v(RF)}, {v(RF+1)}")
e(f"v_and_b32 {vT0}, 3, {vLane}")
e(f"v_lshrrev_b32 {vT1}, 4, {vLane}")
e(f"v_lshl_add_u32 {vT0}, {vT0}, 2, {vT1}")
e(f"s_lshl_b32 {sT[0]}, {sW}, 2")
e(f"v_add_f32 {v(RF)}, {v(RF)}, {v(RF+1)}")
e(f"v_lshl_add_u32 {vT0}, {vT0}, 5, {sT[0]}")
e(f"ds_write_b32 {vT0}, {v(RF)} offset:{LDS_RED}")
e("s_waitcnt lgkmcnt(0)")
e("s_barrier")
e(f"s_cmp_eq_u32 {sW}, 0")
e("s_cbranch_scc0 L_fin")
e(f"v_and_b32 {vT0}, 15, {vLane}")
e(f"v_lshlrev_b32 {vT1}, 5, {vT0}")
FS = 80
e(f"ds_read_b128 {vr(FS,4)}, {vT1} offset:{LDS_RED}")
e(f"ds_read_b128 {vr(FS+4,4)}, {vT1} offset:{LDS_RED+16}")
e(f"s_and_b32 {sT[0]}, s2, 127")
e(f"s_lshl_b32 {sT[0]}, {sT[0]}, 5")
e(f"s_mul_i32 {sT[1]}, {sB}, 1280")
e(f"s_add_u32 {sT[0]}, {sT[0]}, {sT[1]}")
e(f"v_lshl_add_u32 {vT0}, {vT0}, 1, {sT[0]}")
e("s_waitcnt lgkmcnt(0)")
for k in range(4): e(f"v_add_f32 {v(FS+k)}, {v(FS+k)}, {v(FS+4+k)}")
e(f"v_add_f32 {v(FS)}, {v(FS)}, {v(FS+1)}")
e(f"v_add_f32 {v(FS+2)}, {v(FS+2)}, {v(FS+3)}")
e(f"v_add_f32 {v(FS)}, {v(FS)}, {v(FS+2)}")
e(f"v_cvt_pk_bf16_f32 {v(FS)}, {v(FS)}, {v(FS)}")
e("s_mov_b32 exec_lo, 0xffff")
e("s_mov_b32 exec_hi, 0")
e(f"buffer_store_short {v(FS)}, {vT0}, {S_OUT}, 0 offen{(' ' + a.outpol) if a.outpol else ''}")
e("s_cmp_eq_u32 s2, 0")
e("s_cbranch_scc0 L_noepoch")
e("s_mov_b32 exec_lo, 1")
e(f"v_mov_b32 {vT0}, {WS_EPOCH}")
e(f"buffer_store_dword {vNonce}, {vT0}, {S_WS}, 0 offen{(' ' + a.outpol) if a.outpol else ''}")
lab("L_noepoch")
e("s_mov_b64 exec, -1")
lab("L_fin")
if a.tfix:
    e("s_cmp_eq_u32 s2, 0")
    e("s_cbranch_scc0 L_tfix_done")
    e(f"s_add_u32 s96, s100, {a.tfix}")
    lab("L_tfix")
    e("s_memrealtime s[98:99]")
    e("s_waitcnt lgkmcnt(0)")
    e("s_sub_u32 s97, s98, s96")
    e("s_cmp_lt_i32 s97, 0")
    e("s_cbranch_scc1 L_tfix")
    lab("L_tfix_done")
stamp("end")
if a.prof:
    e(f"s_lshl_b32 {sT[0]}, s2, 3")
    e(f"s_add_u32 {sT[0]}, {sT[0]}, {sW}")
    e(f"s_lshl_b32 {sT[0]}, {sT[0]}, 7")
    e(f"s_add_u32 {sT[0]}, {sT[0]}, {WS_PROF}")
    e(f"v_add_u32 {vT0}, {sT[0]}, {vL4}")
    e("s_mov_b32 exec_lo, -1")
    e("s_mov_b32 exec_hi, 0")
    e(f"buffer_store_dword v255, {vT0}, {S_WS}, 0 offen")
if a.dbgspan:
    e("s_cmp_ge_u32 s2, 8")
    e("s_cbranch_scc1 L_end")
    e(f"s_cmp_lg_u32 {sW}, 0")
    e("s_cbranch_scc1 L_end")
    e("s_mov_b32 s96, s100")
    e("s_memrealtime s[100:101]")
    e("s_load_dwordx2 s[12:13], s[0:1], 80")
    e("s_waitcnt lgkmcnt(0)")
    e("v_mov_b32 v20, s96")
    e("v_mov_b32 v21, s100")
    e("s_lshl_b32 s96, s2, 3")
    e("v_mov_b32 v22, s96")
    e("s_mov_b32 exec_lo, 1")
    e("s_mov_b32 exec_hi, 0")
    e("global_store_dwordx2 v22, v[20:21], s[12:13]")
lab("L_end")
e("s_endpgm")
lab("L_codeend")


L += ['.section .rodata,"a"', ".p2align 6", f".amdhsa_kernel {NAME}",
      "  .amdhsa_next_free_vgpr 256", "  .amdhsa_next_free_sgpr 102", "  .amdhsa_accum_offset 256",
      "  .amdhsa_group_segment_fixed_size 0", "  .amdhsa_kernarg_size 96", "  .amdhsa_user_sgpr_count 2",
      "  .amdhsa_user_sgpr_kernarg_segment_ptr 1", "  .amdhsa_system_sgpr_workgroup_id_x 1",
      "  .amdhsa_float_denorm_mode_32 3", ".end_amdhsa_kernel"]
text = "\n".join(L) + "\n"
if a.codepf:
    import subprocess, tempfile, os, re
    def subst(t, nbytes):
        chunks = (nbytes + 1023) // 1024
        return (t.replace("CODE_MAGIC", str(0x10000 // chunks + 1)).replace("CODE_CHUNKS", str(0x1000 + chunks) if nbytes == 0 else str(chunks))
                 .replace("CODE_LAST", str(((nbytes - 16) & ~15) if nbytes else 0x12345)))
    with tempfile.TemporaryDirectory() as d:
        src = os.path.join(d, "k.s"); obj = os.path.join(d, "k.o")
        t0 = text.replace("CODE_MAGIC", "0x12345").replace("CODE_CHUNKS", "0x12345").replace("CODE_LAST", "0x12345")
        open(src, "w").write(t0)
        subprocess.run(["clang", "-x", "assembler", "-target", "amdgcn-amd-amdhsa", "-mcpu=gfx950", "-c", src, "-o", obj], check=True)
        nm = subprocess.run(["llvm-objdump", "-d", "--mcpu=gfx950", obj], capture_output=True, text=True).stdout
        last = re.findall(r"// ([0-9A-F]{12}):", nm)[-1]
        nbytes = int(last, 16) + 4
    chunks = (nbytes + 1023) // 1024
    magic = 0x10000 // chunks + 1
    assert all(((i * magic) >> 16) == i // chunks for i in range(32))
    text = text.replace("CODE_MAGIC", f"{magic:#x}").replace("CODE_LAST", f"{(nbytes - 16) & ~15:#x}")
    text = text.replace("CODE_CHUNKS", str(chunks))
open(a.o, "w").write(text)
if a.prof:
    open(a.o + ".stamps", "w").write("\n".join(PROF_NAMES) + "\n")
```

```python
import argparse, sys

ap = argparse.ArgumentParser()
ap.add_argument("-o", default="kernel.s")
ap.add_argument("--prof", type=int, default=0)
ap.add_argument("--kvpol", default="nt")
ap.add_argument("--wpol", default="nt")
ap.add_argument("--dump", type=int, default=0)
ap.add_argument("--sleep", type=int, default=1)
ap.add_argument("--dper", type=int, default=2)
ap.add_argument("--kfirst", type=int, default=7)
ap.add_argument("--r2last", type=int, default=1)
ap.add_argument("--r2by", default="B")
ap.add_argument("--nda", type=int, default=0)
ap.add_argument("--probe", default="")
ap.add_argument("--probewave", type=int, default=0)
ap.add_argument("--tfix", type=int, default=2000)
ap.add_argument("--codepf", type=int, default=0)
ap.add_argument("--codepf_wave", type=int, default=4)
ap.add_argument("--mlwave", type=int, default=0)
ap.add_argument("--depth", type=int, default=1)
ap.add_argument("--sleep1", type=int, default=4)
ap.add_argument("--mask", type=int, default=0)
ap.add_argument("--prio", type=int, default=1)
ap.add_argument("--tlbwarm", type=int, default=0)
ap.add_argument("--qpol", default="sc1")
ap.add_argument("--mix2", type=int, default=0)
ap.add_argument("--dbgspan", type=int, default=0)
a = ap.parse_args()

NAME = "gated_mix__sliding_block_cached__dense_activation_silu__decode_kernel"
L = []
def e(s): L.append("    " + s)
def lab(s): L.append(s + ":")
def cm(s): L.append("    ; " + s)
KVP = (" " + a.kvpol) if a.kvpol else ""
WP = (" " + a.wpol) if a.wpol else ""

WS_EPOCH = 0
WS_QH = 4096
QH_RB = 768
WS_ATT = WS_QH + 32 * 8 * 2 * QH_RB
WS_FFN = WS_ATT + 2 * 40 * 128 * 64
WS_ML = WS_FFN + 2 * 40 * 128 * 64
WS_END = WS_ML + 2 * 128 * 16
WS_PROF = 4 << 20
WS_DUMP = 8 << 20
WS_SIZE = 16 << 20

LDS_P = 0
LDS_O = LDS_P + 4 * 1536
O_STRIDE = 272
LDS_Q = LDS_O + 16 * O_STRIDE
LDS_H = LDS_Q + 256
LDS_M = LDS_H + 32
LDS_L = LDS_M + 32
LDS_G = LDS_L + 32
LDS_CNT = LDS_G + 16
LDS_CNT2 = LDS_G + 4
LDS_NONCE = LDS_G + 32
LDS_RED = LDS_G + 48
LDS_W2 = (LDS_RED + 512 + 255) // 256 * 256
LDS_WO = LDS_W2 + 20480
LDS_END = LDS_WO + 3 * 40960
LDS_SIZE = (LDS_END + 255) // 256 * 256

sWG = "s2"
S_K, S_V, S_WQ, S_WO, S_W1, S_W2, S_WS, S_OUT = [f"s[{i}:{i+3}]" for i in range(40, 72, 4)]
def srd(n): return {"K": 40, "V": 44, "WQ": 48, "WO": 52, "W1": 56, "W2": 60, "WS": 64, "OUT": 68}[n]
sW, sH, sR, sB, sJ, sP = "s3", "s4", "s5", "s6", "s7", "s8"
sNonce = "s9"
sKO = [f"s{72+i}" for i in range(4)]
sSel = [f"s{76+i}" for i in range(4)]
sPLo, sPHi = "s80", "s81"
sT = [f"s{82+i}" for i in range(10)]
sOOB = "s92"
sIsRed = "s93"
sCnt = "s94"
sWOoff = "s95"
sExec = "s[96:97]"
sChk0, sChk1 = "s98", "s99"
sLdsW = "s10"
sC = "s11"

vLane, vL4, vKV = "v0", "v1", "v2"
vTR = [f"v{3+i}" for i in range(5)]
vDM = [f"v{8+i}" for i in range(5)]
vNonce, vT0, vT1 = "v13", "v14", "v15"
K0, V0, WO0, W20 = 16, 80, 144, 224
vQ = 234
vAcc = 238
vP01, vP23 = "v246", "v247"
vPT = 64
vHop = 250
vW2A = 8
def v(i): return f"v{i}"
def vr(i, n): return f"v[{i}:{i+n-1}]"

PROF_SLOTS = 32
prof_n = [0]
def stamp(name):
    if a.probe and name == a.probe:
        e("s_memrealtime s[96:97]")
        e("s_waitcnt lgkmcnt(0)")
        e("s_sub_u32 s97, s96, s100")
    return stamp_(name)
def stamp_(name):
    if not a.prof: return
    if a.prof == 2 and name not in ("entry", "O barrier", "end"): return
    if name in ("poll addr", "poll issued", "poll 1st ret", "poll 1 issued", "A kernarg", "B kernarg"): return
    i = prof_n[0]; prof_n[0] += 1
    assert i < PROF_SLOTS
    cm(f"stamp {i}: {name}")
    e("s_memrealtime s[100:101]")
    e("s_waitcnt lgkmcnt(0)")
    e(f"v_writelane_b32 v255, s100, {i}")
    PROF_NAMES.append(name)
PROF_NAMES = []

def stampval(name, sreg):
    if a.prof != 1: return
    i = prof_n[0]; prof_n[0] += 1
    assert i < PROF_SLOTS
    e(f"v_writelane_b32 v255, {sreg}, {i}")
    PROF_NAMES.append("#" + name)

def nop(n):
    while n > 0:
        k = min(n, 16); e(f"s_nop {k-1}"); n -= k

def tag4(regs):
    for k in range(4):
        e(f"v_perm_b32 {regs[k]}, {regs[k]}, {vNonce}, {sSel[k]}")

def check4(base, tmp0, tmp1, dst):
    e(f"v_perm_b32 {tmp0}, {v(base+1)}, {v(base)}, {sChk0}")
    e(f"v_perm_b32 {tmp1}, {v(base+3)}, {v(base+2)}, {sChk0}")
    e(f"v_perm_b32 {tmp0}, {tmp1}, {tmp0}, {sChk1}")
    e(f"v_cmp_ne_u32 {dst}, {tmp0}, {vNonce}")

L.append(f"; @launch grid=(256,1,1) block=(512,1,1) lds={LDS_SIZE}")
L.append('.amdgcn_target "amdgcn-amd-amdhsa--gfx950"')
L += [".text", f".globl {NAME}", ".p2align 8", f".type {NAME},@function", f"{NAME}:"]

PQ, PH = V0, V0 + 20
PACC = V0 + 40
PG = WO0
W2D = 238
sDMA = ["s36", "s37", sT[4], sT[5]]
sW2g, sW2l = sT[6], sT[9]
def mk_srd(name, ptr, size):
    d = srd(name)
    e(f"s_mov_b32 s{d}, s{ptr}")
    e(f"s_and_b32 s{d+1}, s{ptr+1}, 0xffff")
    e(f"s_mov_b32 s{d+2}, {size}")
    e(f"s_mov_b32 s{d+3}, 0x20000")
def k_load(t):
    e(f"buffer_load_dwordx4 {vr(K0+4*t,4)}, {vKV}, {S_K}, {sKO[t//4]} offen offset:{(t%4)*1024}{KVP}")
def v_load(t):
    e(f"buffer_load_dwordx4 {vr(V0+4*t,4)}, {vKV}, {S_V}, {sKO[t//4]} offen offset:{(t%4)*1024}{KVP}")
def lane_consts():
    e(f"s_mul_i32 {sLdsW}, {sW}, 5120")
    e(f"s_mul_i32 {sWOoff}, {sH}, 163840")
    e(f"s_add_u32 {sWOoff}, {sWOoff}, {sLdsW}")
    e(f"s_lshr_b32 s15, {sW}, 1")
    e(f"s_and_b32 s15, s15, 1")
    e(f"s_lshl_b32 s15, s15, 3")
    for u in range(5):
        e(f"v_add_u32 {vT0}, {64*u}, {vLane}")
        e(f"v_mul_u32_u24 {vT1}, 205, {vT0}")
        e(f"v_lshrrev_b32 {vT1}, 14, {vT1}")
        e(f"v_mul_u32_u24 {vDM[u]}, 80, {vT1}")
        e(f"v_sub_u32 {vT0}, {vT0}, {vDM[u]}")
        e(f"v_lshl_add_u32 {vDM[u]}, {vT1}, 1, s15")
        e(f"v_xor_b32 {vT0}, {vT0}, {vDM[u]}")
        e(f"v_lshlrev_b32 {vT0}, 4, {vT0}")
        e(f"v_mul_u32_u24 {vT1}, 1280, {vT1}")
        e(f"v_add_u32 {vDM[u]}, {vT0}, {vT1}")
    e(f"s_lshl_b32 s15, {sW}, 2")
    for u in range(3):
        d = v(W2D+u)
        e(f"v_add_u32 {vT0}, {64*u}, {vLane}")
        e(f"v_mul_u32_u24 {vT1}, 205, {vT0}")
        e(f"v_lshrrev_b32 {vT1}, 14, {vT1}")
        e(f"v_mul_u32_u24 {d}, 80, {vT1}")
        e(f"v_sub_u32 {vT0}, {vT0}, {d}")
        e(f"v_lshl_add_u32 {d}, {vT1}, 1, s15")
        e(f"v_and_b32 {d}, 14, {d}")
        e(f"v_xor_b32 {vT0}, {vT0}, {d}")
        e(f"v_lshlrev_b32 {vT0}, 4, {vT0}")
        e(f"v_mul_u32_u24 {vT1}, 1280, {vT1}")
        e(f"v_add_u32 {d}, {vT0}, {vT1}")
def dma_scalars():
    for ks in range(4):
        e(f"s_add_u32 {sDMA[ks]}, {sWOoff}, {ks*40960}")
    e(f"s_mul_i32 {sW2g}, {sP}, {16*1280}")
    e(f"s_mul_i32 {sW2l}, {sW}, 2560")
    e(f"s_add_u32 {sW2g}, {sW2g}, {sW2l}")
def dma_list():
    out = []
    for ks in range(3):
        for u in range(5):
            out.append([f"s_add_u32 m0, {sLdsW}, {LDS_WO + ks*40960 + u*1024}", "s_nop 0",
                        f"buffer_load_dwordx4 {vDM[u]}, {S_WO}, {sDMA[ks]} offen{WP} lds"])
    for u in range(3):
        g = [f"s_add_u32 m0, {sW2l}, {LDS_W2 + u*1024}"]
        g += ["s_mov_b32 exec_hi, 0"] if u == 2 else ["s_nop 0"]
        g += [f"buffer_load_dwordx4 {v(W2D+u)}, {S_W2}, {sW2g} offen{WP} lds"]
        if u == 2: g += ["s_mov_b32 exec_hi, -1"]
        out.append(g)
    return out
def late_srds(skipk=False):
    if not skipk: mk_srd("K", 18, 134217728)
    mk_srd("V", 20, 134217728)
    mk_srd("WO", 24, 4096 * 640 * 2)
    mk_srd("W2", 30, "s13")
    mk_srd("WS", 38, WS_SIZE)
    mk_srd("OUT", 34, 2560)
    if not skipk: e(f"s_load_dword {sNonce}, s[38:39], {WS_EPOCH}")
def consts():
    e(f"s_mov_b32 {sPLo}, 0x05040100")
    e(f"s_mov_b32 {sPHi}, 0x07060302")
    for k in range(4):
        e(f"s_mov_b32 {sSel[k]}, {0x07060500 + k:#x}")
    e(f"s_mov_b32 {sChk0}, 0x0c0c0400")
    e(f"s_mov_b32 {sChk1}, 0x05040100")
    import struct
    cval = struct.unpack("<I", struct.pack("<f", (128 ** -0.5) * 1.4426950408889634))[0]
    e(f"s_mov_b32 {sC}, {cval:#x}")
def tr_addr():
    e(f"v_lshrrev_b32 {vT0}, 4, {vLane}")
    e(f"v_bfe_u32 {vT1}, {vLane}, 2, 2")
    e(f"v_lshl_add_u32 v234, {vT0}, 3, {vT1}")
    e(f"v_mul_u32_u24 v234, 1280, v234")
    e(f"v_and_b32 v235, 1, {vT0}")
    e(f"v_lshlrev_b32 v235, 3, v235")
    e(f"v_lshl_add_u32 v235, {vT1}, 1, v235")
    e(f"v_and_b32 v236, 1, {vLane}")
    e(f"v_lshl_add_u32 v234, v236, 3, v234")
    e(f"v_add_u32 v234, {LDS_WO}, v234")
    e(f"v_bfe_u32 v236, {vLane}, 1, 1")
    e(f"s_mul_i32 {sT[2]}, {sW}, 10")
    for t in range(5):
        e(f"s_add_u32 {sT[3]}, {sT[2]}, {2*t}")
        e(f"v_add_u32 v237, {sT[3]}, v236")
        e(f"v_xor_b32 v237, v237, v235")
        e(f"v_lshl_add_u32 {vTR[t]}, v237, 4, v234")
    e(f"s_mul_i32 {sT[3]}, {sW}, {O_STRIDE}")
    e(f"s_add_u32 {sT[3]}, {sT[3]}, {LDS_O + 8*O_STRIDE}")
    e(f"v_add_u32 v237, {sT[3]}, {vL4}")
    e("v_mov_b32 v236, 0")
    e("ds_write_b32 v237, v236")

def mix_loads(big, t0=0):
    d = dma_list()
    per = a.dper
    di = 0; after = 0
    for t in range(t0, 16):
        big(t)
        if di >= len(d): after += 1
        for _ in range(per):
            if di < len(d):
                for x in d[di]: e(x)
                di += 1
    assert di == len(d)
    return after
def kv_consts():
    e(f"s_lshr_b32 {sT[0]}, s2, 3")
    e(f"s_lshl_b32 {sT[1]}, {sW}, 2")
    e(f"s_add_u32 {sT[1]}, {sT[1]}, {sT[0]}")
    for q in range(4):
        e(f"s_add_u32 {sKO[q]}, {sT[1]}, {q}")
        e(f"s_and_b32 {sKO[q]}, {sKO[q]}, 31")
        e(f"s_lshl_b32 {sKO[q]}, {sKO[q]}, 12")
    e(f"s_lshl_b32 {sT[2]}, {sB}, 5")
    e(f"s_add_u32 {sT[2]}, {sT[2]}, {sH}")
    e(f"s_lshl_b32 {sT[2]}, {sT[2]}, 21")
    e(f"s_lshl_b32 {sT[3]}, {sJ}, 17")
    e(f"s_add_u32 {sT[2]}, {sT[2]}, {sT[3]}")
    e(f"s_add_u32 {sT[2]}, {sT[2]}, {6144*256}")
    e(f"v_lshl_add_u32 {vKV}, {vLane}, 4, {sT[2]}")
def flags():
    e(f"s_and_b32 {sT[2]}, s2, 127")
    e(f"s_cmp_lt_u32 {sT[2]}, 40")
    e(f"s_cselect_b32 {sIsRed}, 1, 0")
    e(f"s_cmp_lt_u32 {sH}, 27")
    e(f"s_cselect_b32 s12, {640*1728*2}, 0")
    e(f"s_cselect_b32 s13, {1728*640*2}, 0")
    e(f"s_cselect_b32 {sOOB}, 0, 0x80000000")

e("s_cmp_ge_u32 s2, 256")
e("s_cbranch_scc1 L_end")
e("s_load_dwordx16 s[16:31], s[0:1], 0")
e("s_load_dwordx8 s[32:39], s[0:1], 64")
if a.prof:
    e("v_mov_b32 v255, 0")
stamp("entry")
if a.dbgspan or a.probe:
    e("s_memrealtime s[100:101]")
e("v_lshrrev_b32 v1, 6, v0")
e("v_and_b32 v0, 63, v0")
e(f"v_readfirstlane_b32 {sW}, v1")
e(f"s_and_b32 {sH}, s2, 7")
e(f"s_lshr_b32 {sT[0]}, s2, 3")
e(f"s_and_b32 {sT[1]}, {sT[0]}, 3")
e(f"s_lshl_b32 {sT[1]}, {sT[1]}, 3")
e(f"s_or_b32 {sH}, {sH}, {sT[1]}")
e(f"s_lshr_b32 {sR}, s2, 5")
e(f"s_lshr_b32 {sB}, {sR}, 2")
e(f"s_and_b32 {sJ}, {sR}, 3")
e(f"s_lshl_b32 {sP}, {sH}, 2")
e(f"s_or_b32 {sP}, {sP}, {sJ}")
e(f"v_lshlrev_b32 {vL4}, 2, {vLane}")
flags()
e(f"s_cmp_ge_u32 {sW}, 4")
e("s_cbranch_scc1 L_B0")
e(f"s_mul_i32 {sT[5]}, {sR}, 80")
e(f"s_mul_i32 {sT[6]}, {sW}, 20")
e(f"s_add_u32 {sT[5]}, {sT[5]}, {sT[6]}")
e(f"s_lshl_b32 s14, {sT[5]}, 1")
e(f"s_lshl_b32 {sT[7]}, {sT[5]}, 13")
e(f"s_lshl_b32 {sT[8]}, {sH}, 8")
e(f"s_add_u32 {sT[7]}, {sT[7]}, {sT[8]}")
e(f"s_mul_i32 {sT[8]}, {sT[5]}, 3456")
e(f"s_lshl_b32 {sT[9]}, {sH}, 7")
e(f"s_add_u32 {sT[8]}, {sT[8]}, {sT[9]}")
e(f"s_lshl_b32 {sT[0]}, {sW}, 2")
e(f"v_mov_b32 v8, {sT[0]}")
e(f"v_mov_b32 v9, 0")
e(f"ds_write_b32 v8, v9 offset:{LDS_CNT}")
e(f"v_lshlrev_b32 {vT0}, 1, {vLane}")
e("s_waitcnt lgkmcnt(0)")
e("s_barrier")
stamp("A kernarg")
mk_srd("WQ", 22, 640 * 4096 * 2)
for t in range(20):
    e(f"buffer_load_dword {v(PQ+t)}, {vL4}, {S_WQ}, {sT[7]} offen{WP}")
    if t < 19: e(f"s_add_u32 {sT[7]}, {sT[7]}, 8192")
mk_srd("W1", 28, "s12")
for t in range(0, 20, 2):
    e(f"buffer_load_ushort {v(PH+t)}, {vT0}, {S_W1}, {sT[8]} offen{WP}")
    e(f"buffer_load_ushort {v(PH+t+1)}, {vT0}, {S_W1}, {sT[8]} offen offset:3456{WP}")
    if t < 18: e(f"s_add_u32 {sT[8]}, {sT[8]}, 6912")
stamp("A P issued")
late_srds()
e("s_mov_b64 s[12:13], s[16:17]")
XR = {0: list(range(16, 26)), 1: list(range(28, 36)) + [26, 27]}
e(f"s_load_dwordx8 s[16:23], s[12:13], s14")
e(f"s_load_dwordx2 s[24:25], s[12:13], s14 offset:32")
e(f"s_load_dwordx8 s[28:35], s[12:13], s14 offset:1280")
e(f"s_load_dwordx2 s[26:27], s[12:13], s14 offset:1312")
kv_consts()
lane_consts()
consts()
tr_addr()
for i in range(6):
    e(f"v_mov_b32 {v(PACC+i)}, 0")
e("s_waitcnt vmcnt(0) lgkmcnt(0)")
stamp("P data")
e(f"s_add_u32 {sNonce}, {sNonce}, 0x01010101")
e(f"v_mov_b32 {vNonce}, {sNonce}")
for t in range(20):
    half = t & 1; idx = t >> 1
    for b in range(2):
        r = XR[b][idx]
        if half == 0: e(f"s_lshl_b32 {sT[b]}, s{r}, 16")
        else: e(f"s_and_b32 {sT[b]}, s{r}, 0xffff0000")
    e(f"v_lshlrev_b32 {vT0}, 16, {v(PQ+t)}")
    e(f"v_and_b32 {vT1}, 0xffff0000, {v(PQ+t)}")
    e(f"v_lshlrev_b32 {v(PH+t)}, 16, {v(PH+t)}")
    e(f"v_fmac_f32 {v(PACC+0)}, {sT[0]}, {vT0}")
    e(f"v_fmac_f32 {v(PACC+1)}, {sT[0]}, {vT1}")
    e(f"v_fmac_f32 {v(PACC+2)}, {sT[1]}, {vT0}")
    e(f"v_fmac_f32 {v(PACC+3)}, {sT[1]}, {vT1}")
    e(f"v_fmac_f32 {v(PACC+4)}, {sT[0]}, {v(PH+t)}")
    e(f"v_fmac_f32 {v(PACC+5)}, {sT[1]}, {v(PH+t)}")
e(f"s_mul_i32 {sT[0]}, {sW}, 1536")
e(f"s_add_u32 {sT[0]}, {sT[0]}, {LDS_P}")
e(f"v_lshl_add_u32 {vT0}, {vLane}, 3, {sT[0]}")
e(f"v_add_u32 {vT1}, {sT[0]}, {vL4}")
e(f"ds_write_b64 {vT0}, {vr(PACC,2)}")
e(f"ds_write_b64 {vT0}, {vr(PACC+2,2)} offset:768")
e(f"ds_write_b32 {vT1}, {v(PACC+4)} offset:512")
e(f"ds_write_b32 {vT1}, {v(PACC+5)} offset:{768+512}")
e(f"s_lshl_b32 {sT[0]}, {sW}, 2")
e(f"v_mov_b32 {vT0}, {sT[0]}")
e("s_waitcnt lgkmcnt(0)")
e(f"v_mov_b32 {vT1}, 1")
e(f"ds_write_b32 {vT0}, {vT1} offset:{LDS_CNT}")
e(f"ds_write_b32 {vT0}, {vNonce} offset:{LDS_NONCE}")
dma_scalars()
e(f"s_cmp_ge_u32 {sW}, 2")
e("s_cbranch_scc1 L_nopub")
e(f"s_mov_b32 {sCnt}, 0")
e(f"v_mov_b32 {vT0}, 0")
lab("L_aspin")
e(f"ds_read_b128 {vr(PACC,4)}, {vT0} offset:{LDS_CNT}")
e(f"s_add_u32 {sCnt}, {sCnt}, 1")
e("s_waitcnt lgkmcnt(0)")
e(f"v_and_b32 {v(PACC)}, {v(PACC)}, {v(PACC+1)}")
e(f"v_and_b32 {v(PACC+2)}, {v(PACC+2)}, {v(PACC+3)}")
e(f"v_and_b32 {v(PACC)}, {v(PACC)}, {v(PACC+2)}")
e(f"s_cmp_gt_u32 {sCnt}, 100000")
e("s_cbranch_scc1 L_aok")
e(f"v_cmp_ne_u32 vcc, 1, {v(PACC)}")
e("s_cbranch_vccnz L_aspin")
lab("L_aok")
PS = V0
e(f"s_mul_i32 {sT[0]}, {sW}, 768")
e(f"s_add_u32 {sT[0]}, {sT[0]}, {LDS_P}")
e(f"v_lshl_add_u32 {vT0}, {vLane}, 4, {sT[0]}")
for w in range(4):
    e(f"ds_read_b128 {vr(PS+4*w,4)}, {vT0} offset:{w*1536}")
e(f"s_lshl_b32 {sT[1]}, {sH}, 3")
e(f"s_add_u32 {sT[1]}, {sT[1]}, {sR}")
e(f"s_lshl_b32 {sT[1]}, {sT[1]}, 1")
e(f"s_add_u32 {sT[1]}, {sT[1]}, {sW}")
e(f"s_mul_i32 {sT[1]}, {sT[1]}, {QH_RB}")
e(f"s_add_u32 {sT[1]}, {sT[1]}, {WS_QH}")
e(f"v_lshl_add_u32 {vT1}, {vLane}, 4, {sT[1]}")
e("s_waitcnt lgkmcnt(0)")
for (n, off) in ((2, 8), (1, 4)):
    for i in range(n):
        for k in range(4):
            e(f"v_add_f32 {v(PS+4*i+k)}, {v(PS+4*i+k)}, {v(PS+4*i+k+off)}")
tag4([v(PS+k) for k in range(4)])
e("s_mov_b32 exec_hi, 0xffff")
e(f"buffer_store_dwordx4 {vr(PS,4)}, {vT1}, {S_WS}, 0 offen sc1")
e("s_mov_b32 exec_hi, -1")
lab("L_nopub")
stamp("published")
nA = mix_loads(k_load)
stamp("A mix issued")
QD = WO0 + 60
QT = 246
e(f"v_mov_b32 {v(QT)}, 0")
e(f"v_mov_b32 {v(QT+1)}, 0")
e(f"v_mov_b32 {v(QT+6)}, 0")
e(f"s_cmp_eq_u32 {sW}, 0")
e("s_cbranch_scc0 L_noq")
e(f"s_lshl_b32 {sT[0]}, {sH}, 4")
e(f"s_add_u32 {sT[0]}, {sT[0]}, {sB}")
e(f"s_mul_i32 {sT[0]}, {sT[0]}, {QH_RB}")
e(f"s_add_u32 {sT[0]}, {sT[0]}, {WS_QH}")
e(f"v_lshrrev_b32 {vT0}, 5, {vLane}")
e(f"v_mul_u32_u24 {vT0}, {2*QH_RB}, {vT0}")
e(f"v_and_b32 {vT1}, 31, {vLane}")
e(f"v_lshl_add_u32 {vT0}, {vT1}, 4, {vT0}")
e(f"v_add_u32 {v(QT)}, {sT[0]}, {vT0}")
e(f"v_bfe_u32 {vT0}, {vLane}, 2, 3")
e(f"v_mul_u32_u24 {vT0}, {2*QH_RB}, {vT0}")
e(f"v_and_b32 {vT1}, 3, {vLane}")
e(f"v_lshl_add_u32 {vT0}, {vT1}, 4, {vT0}")
e(f"s_lshl_b32 {sT[1]}, {sJ}, 6")
e(f"s_add_u32 {sT[1]}, {sT[1]}, {sT[0]}")
e(f"s_add_u32 {sT[1]}, {sT[1]}, 512")
e(f"v_add_u32 {v(QT+1)}, {sT[1]}, {vT0}")
e(f"s_mov_b32 {sCnt}, 0")
stamp("poll addr")
e(f"v_add_u32 {v(QT+6)}, {8*QH_RB}, {v(QT)}")
lab("L_qpoll")
for u in range(4):
    e(f"buffer_load_dwordx4 {vr(QD+4*u,4)}, {v(QT) if u < 2 else v(QT+6)}, {S_WS}, 0 offen offset:{(u&1)*4*QH_RB} {a.qpol}")
e(f"buffer_load_dwordx4 {vr(QD+16,4)}, {v(QT+1)}, {S_WS}, 0 offen {a.qpol}")

e("s_waitcnt vmcnt(0)")

check4(QD, v(QT+2), v(QT+3), "vcc")
for u in range(1, 5):
    check4(QD+4*u, v(QT+2), v(QT+3), f"s[12:13]")
    nop(1)
    e("s_or_b64 vcc, vcc, s[12:13]")
nop(1)
e("s_cbranch_vccz L_qok")
e(f"s_add_u32 {sCnt}, {sCnt}, 1")
e(f"s_cmp_gt_u32 {sCnt}, 20000")
e("s_cbranch_scc1 L_qok")
e("s_sleep 2")
e("s_branch L_qpoll")
lab("L_qok")
for k in range(20): e(f"v_and_b32 {v(QD+k)}, 0xffffff00, {v(QD+k)}")
for u in range(1, 4):
    for k in range(4):
        e(f"v_add_f32 {v(QD+k)}, {v(QD+k)}, {v(QD+4*u+k)}")
nop(2)
e(f"v_permlane32_swap_b32 {v(QD)}, {v(QD+2)}")
e(f"v_permlane32_swap_b32 {v(QD+1)}, {v(QD+3)}")
nop(1)
e(f"v_add_f32 {v(QD)}, {v(QD)}, {v(QD+2)}")
e(f"v_add_f32 {v(QD+1)}, {v(QD+1)}, {v(QD+3)}")
e(f"v_and_b32 {vT0}, 31, {vLane}")
e(f"v_lshrrev_b32 {vT1}, 5, {vLane}")
e(f"v_lshlrev_b32 {vT1}, 2, {vT1}")
e(f"v_lshl_add_u32 {vT0}, {vT0}, 3, {vT1}")
e(f"v_cvt_pk_bf16_f32 {v(QD)}, {v(QD)}, {v(QD+1)}")
e(f"ds_write_b32 {vT0}, {v(QD)} offset:{LDS_Q}")
HD = QD + 16
for ctl in ("row_ror:4", "row_ror:8"):
    for k in range(4):
        e(f"v_add_f32_dpp {v(HD+k)}, {v(HD+k)}, {v(HD+k)} {ctl} row_mask:0xf bank_mask:0xf")
for k in range(4): e(f"v_mov_b32 {v(QT+2+k)}, {v(HD+k)}")
nop(1)
for k in range(4): e(f"v_permlane16_swap_b32 {v(HD+k)}, {v(QT+2+k)}")
nop(1)
for k in range(4): e(f"v_add_f32 {v(HD+k)}, {v(HD+k)}, {v(QT+2+k)}")
for k in range(4): e(f"v_mul_f32 {v(QT+2+k)}, 0xbfb8aa3b, {v(HD+k)}")
for k in range(4): e(f"v_exp_f32 {v(QT+2+k)}, {v(QT+2+k)}")
for k in range(4): e(f"v_add_f32 {v(QT+2+k)}, 1.0, {v(QT+2+k)}")
for k in range(4): e(f"v_rcp_f32 {v(QT+2+k)}, {v(QT+2+k)}")
for k in range(4): e(f"v_mul_f32 {v(HD+k)}, {v(HD+k)}, {v(QT+2+k)}")
e(f"v_cvt_pk_bf16_f32 {v(HD)}, {v(HD)}, {v(HD+1)}")
e(f"v_cvt_pk_bf16_f32 {v(HD+1)}, {v(HD+2)}, {v(HD+3)}")
e(f"v_and_b32 {vT0}, 3, {vLane}")
e(f"v_lshlrev_b32 {vT0}, 3, {vT0}")
e(f"ds_write_b64 {vT0}, {vr(HD,2)} offset:{LDS_H}")
stamp("q ready")
stampval("q retries", sCnt)
lab("L_noq")
e(f"s_waitcnt vmcnt({nA}) lgkmcnt(0)")
e("s_barrier")
stamp("Ra A")
for t in range(8): v_load(t)
e("s_branch L_J2")
lab("L_B0")
kv_consts()
e("s_waitcnt lgkmcnt(0)")
e("s_barrier")
stamp("B kernarg")
mk_srd("K", 18, 134217728)
e(f"s_cmp_eq_u32 {sW}, 7")
e(f"s_cselect_b32 {sT[0]}, {sIsRed}, 0")
e(f"s_cmp_eq_u32 {sT[0]}, 0")
e("s_cbranch_scc1 L_nogate_ld")
e(f"s_mul_i32 {sT[0]}, {sB}, 1280")
e(f"v_add_u32 {vT1}, {sT[0]}, {vL4}")
for u in range(5):
    e(f"global_load_dword {v(PG+u)}, {vT1}, s[16:17] offset:{u*256}")
for u in range(5):
    e(f"global_load_dword {v(PG+5+u)}, {vL4}, s[32:33] offset:{u*256}")
lab("L_nogate_ld")
if a.codepf:
    e(f"s_cmp_eq_u32 {sW}, {a.codepf_wave}")
    e("s_cbranch_scc0 L_nocodepf")
    e("s_getpc_b64 s[36:37]")
    lab("L_pcref")
    e(f"s_sub_u32 s36, s36, L_pcref-{NAME}")
    e("s_subb_u32 s37, s37, 0")
    e(f"s_lshr_b32 {sT[0]}, s2, 3")
    e(f"s_mul_i32 {sT[1]}, {sT[0]}, CODE_MAGIC")
    e(f"s_lshr_b32 {sT[1]}, {sT[1]}, 16")
    e(f"s_mul_i32 {sT[1]}, {sT[1]}, CODE_CHUNKS")
    e(f"s_sub_u32 {sT[0]}, {sT[0]}, {sT[1]}")
    e(f"s_lshl_b32 {sT[0]}, {sT[0]}, 10")
    e(f"v_lshl_add_u32 {vT0}, {vLane}, 4, {sT[0]}")
    e(f"v_min_u32 {vT0}, CODE_LAST, {vT0}")
    e(f"global_load_dwordx4 {vr(V0+8,4)}, {vT0}, s[36:37]")
    lab("L_nocodepf")
if a.tlbwarm:
    mk_srd("V", 20, 134217728)
    mk_srd("WO", 24, 4096 * 640 * 2)
    mk_srd("W2", 30, "s13")
    mk_srd("WS", 38, WS_SIZE)
    e(f"s_mul_i32 {sT[4]}, {sH}, 163840")
    e(f"s_mul_i32 {sT[5]}, {sP}, {16*1280}")
    e(f"v_mov_b32 v8, 0")
    e(f"v_and_b32 v9, 0xffffffc0, {vKV}")
    e(f"buffer_load_dword v{V0}, v9, {S_V}, {sKO[0]} offen{KVP}")
    e(f"buffer_load_dword v{V0+1}, v8, {S_WO}, {sT[4]} offen{WP}")
    e(f"buffer_load_dword v{V0+2}, v8, {S_W2}, {sT[5]} offen{WP}")
    e(f"buffer_load_dword v{V0+3}, v8, {S_WS}, 0 offen offset:{WS_EPOCH+128} sc1")
for t in range(a.kfirst): k_load(t)
stamp("B first K")
late_srds(skipk=True)
lane_consts()
dma_scalars()
consts()
tr_addr()
mix_loads(k_load, a.kfirst)
stamp("B mix issued")
for t in range(16): v_load(t)
stamp("B V issued")
e(f"s_cmp_eq_u32 {sW}, 7")
e(f"s_cselect_b32 {sT[0]}, {sIsRed}, 0")
e(f"s_cmp_eq_u32 {sT[0]}, 0")
e("s_cbranch_scc1 L_nogate")
e(f"s_waitcnt vmcnt({50 + (4 if a.tlbwarm else 0) + (1 if a.codepf and a.codepf_wave == 7 else 0)})")
e(f"v_dot2_f32_bf16 {vT0}, {v(PG)}, {v(PG+5)}, 0")
for u in range(1, 5):
    e(f"v_dot2_f32_bf16 {vT0}, {v(PG+u)}, {v(PG+5+u)}, {vT0}")
nop(3)
for ctl in ("quad_perm:[1,0,3,2]", "quad_perm:[2,3,0,1]", "row_ror:4", "row_ror:8"):
    e(f"v_add_f32_dpp {vT0}, {vT0}, {vT0} {ctl} row_mask:0xf bank_mask:0xf")
    nop(2)
for sw in ("v_permlane16_swap_b32", "v_permlane32_swap_b32"):
    e(f"v_mov_b32 {vT1}, {vT0}")
    nop(2)
    e(f"{sw} {vT0}, {vT1}")
    nop(1)
    e(f"v_add_f32 {vT0}, {vT0}, {vT1}")
e(f"v_mul_f32 {vT0}, 0xbfb8aa3b, {vT0}")
e(f"v_exp_f32 {vT0}, {vT0}")
nop(1)
e(f"v_add_f32 {vT0}, 1.0, {vT0}")
e(f"v_rcp_f32 {vT0}, {vT0}")
e(f"v_mov_b32 {vT1}, {LDS_G}")
nop(1)
e(f"ds_write_b32 {vT1}, {vT0}")
lab("L_nogate")
e("s_waitcnt vmcnt(16) lgkmcnt(0)")
e("s_barrier")
e(f"v_mov_b32 {vT0}, 0")
e(f"ds_read_b32 {vNonce}, {vT0} offset:{LDS_NONCE}")
stamp("Ra B")
lab("L_J2")
def tr_reads(pairs):
    for (ks, slot) in pairs:
        for t in range(5):
            r = WO0 + (ks*5 + t)*4
            base, off = vTR[t], slot*40960
            if off + 5120 > 65535:
                base, off = v(240+t), 0
            e(f"ds_read_b64_tr_b16 {vr(r,2)}, {base} offset:{off}")
            e(f"ds_read_b64_tr_b16 {vr(r+2,2)}, {base} offset:{off + 5120}")
for t in range(5):
    e(f"v_add_u32 {v(240+t)}, {2*40960}, {vTR[t]}")
tr_reads([(0, 0), (1, 1), (2, 2)])
e(f"v_lshrrev_b32 {vT1}, 4, {vLane}")
e(f"v_mul_u32_u24 {vT1}, 5120, {vT1}")
e(f"v_add_u32 {vT1}, {LDS_WO - LDS_W2}, {vT1}")
for t in range(5):
    e(f"v_sub_u32 {v(240+t)}, {vTR[t]}, {vT1}")
for t in range(5):
    e(f"ds_read_b64_tr_b16 {vr(W20+2*t,2)}, {v(240+t)}")
e(f"v_and_b32 {vT0}, 15, {vLane}")
e(f"v_lshlrev_b32 {vT0}, 4, {vT0}")
e(f"ds_read_b128 {vr(vQ,4)}, {vT0} offset:{LDS_Q}")
e(f"v_lshrrev_b32 {vT1}, 4, {vLane}")
e(f"v_lshlrev_b32 {vT1}, 3, {vT1}")
e(f"ds_read_b64 {vr(vHop,2)}, {vT1} offset:{LDS_H}")
e("s_waitcnt lgkmcnt(0)")
e("s_barrier")
stamp("Rb")
KS = lambda t: K0 + 4*t
S = [KS(t) for t in range(4)]
vM, vLs = "v17", "v18"
def allred(reg, op, tmp, rows=True, quads=False):
    if quads:
        for ctl in ("quad_perm:[1,0,3,2]", "quad_perm:[2,3,0,1]"):
            e(f"{op}_dpp {reg}, {reg}, {reg} {ctl} row_mask:0xf bank_mask:0xf"); nop(2)
    for ctl in ("row_ror:4", "row_ror:8"):
        e(f"{op}_dpp {reg}, {reg}, {reg} {ctl} row_mask:0xf bank_mask:0xf"); nop(2)
    if rows:
        for sw in ("v_permlane16_swap_b32", "v_permlane32_swap_b32"):
            e(f"v_mov_b32 {tmp}, {reg}"); nop(2)
            e(f"{sw} {reg}, {tmp}"); nop(1)
            e(f"{op} {reg}, {reg}, {tmp}")
def qk_softmax():
    cm("QK^T")
    for i in range(4):
        for t in range(16):
            c = "0" if i == 0 else v(KS(t))
            e(f"v_dot2_f32_bf16 {v(KS(t))}, {v(KS(t)+i)}, {v(vQ+i)}, {c}")
    cm("16-lane reduce-scatter of the scores")
    for t in range(8):
        e(f"v_add_f32_dpp {v(KS(t))}, {v(KS(t))}, {v(KS(t))} row_ror:8 row_mask:0xf bank_mask:0x3")
    for t in range(8):
        e(f"v_add_f32_dpp {v(KS(t))}, {v(KS(t+8))}, {v(KS(t+8))} row_ror:8 row_mask:0xf bank_mask:0xc")
    for t in range(4):
        e(f"v_add_f32_dpp {v(KS(t))}, {v(KS(t))}, {v(KS(t))} row_half_mirror row_mask:0xf bank_mask:0x5")
    for t in range(4):
        e(f"v_add_f32_dpp {v(KS(t))}, {v(KS(t+4))}, {v(KS(t+4))} row_half_mirror row_mask:0xf bank_mask:0xa")
    for ctl in ("quad_perm:[1,0,3,2]", "quad_perm:[2,3,0,1]"):
        for t in range(4):
            e(f"v_add_f32_dpp {v(KS(t))}, {v(KS(t))}, {v(KS(t))} {ctl} row_mask:0xf bank_mask:0xf")
    cm("softmax over the wave's 64 keys")
    e(f"v_max3_f32 {vT0}, {v(S[0])}, {v(S[1])}, {v(S[2])}")
    e(f"v_max_f32 {vT0}, {vT0}, {v(S[3])}")
    nop(2)
    allred(vT0, "v_max_f32", vT1)
    e(f"v_mul_f32 {vM}, {sC}, {vT0}")
    for t in range(4):
        e(f"v_fma_f32 {v(S[t])}, {v(S[t])}, {sC}, -{vM}")
    for t in range(4):
        e(f"v_exp_f32 {v(S[t])}, {v(S[t])}")
    nop(1)
    e(f"v_cvt_pk_bf16_f32 {vP01}, {v(S[0])}, {v(S[1])}")
    e(f"v_cvt_pk_bf16_f32 {vP23}, {v(S[2])}, {v(S[3])}")
    e(f"v_add_f32 {vLs}, {v(S[0])}, {v(S[1])}")
    e(f"v_add_f32 {vT0}, {v(S[2])}, {v(S[3])}")
    e(f"v_add_f32 {vLs}, {vLs}, {vT0}")
    nop(2)
    allred(vLs, "v_add_f32", vT1)
    e(f"s_lshl_b32 {sT[0]}, {sW}, 2")
    e(f"v_mov_b32 {vT0}, {sT[0]}")
    e(f"ds_write_b32 {vT0}, {vM} offset:{LDS_M}")
    e(f"ds_write_b32 {vT0}, {vLs} offset:{LDS_L}")
def publish(R0, R4, a0, a4, extra_off, tmpb):
    G0 = tmpb; G4 = tmpb + 4
    for k in range(4):
        e(f"v_mov_b32_dpp {v(G0+k)}, {R0} quad_perm:[{k},{k},{k},{k}] row_mask:0xf bank_mask:0xf")
    for k in range(4):
        e(f"v_mov_b32_dpp {v(G4+k)}, {R4} quad_perm:[{k},{k},{k},{k}] row_mask:0xf bank_mask:0xf")
    tag4([v(G0+k) for k in range(4)])
    tag4([v(G4+k) for k in range(4)])
    e("s_mov_b32 exec_lo, 0x11111111")
    e("s_mov_b32 exec_hi, 0x11111111")
    e(f"buffer_store_dwordx4 {vr(G0,4)}, {a0}, {S_WS}, {extra_off} offen sc1")
    e("s_mov_b32 exec_lo, 0x1111")
    e("s_mov_b32 exec_hi, 0")
    e(f"buffer_store_dwordx4 {vr(G4,4)}, {a4}, {S_WS}, {extra_off} offen sc1")
    e("s_mov_b64 exec, -1")
FD = 32
PUB = 52
sAttOff, sFfnOff = sT[3], sT[2]
def pub_addr():
    e(f"s_mul_i32 {sT[0]}, {sB}, 40")
    e(f"s_mul_i32 {sT[1]}, {sW}, 5")
    e(f"s_add_u32 {sT[0]}, {sT[0]}, {sT[1]}")
    e(f"s_lshl_b32 {sT[0]}, {sT[0]}, 7")
    e(f"s_add_u32 {sT[0]}, {sT[0]}, {sP}")
    e(f"s_lshl_b32 {sT[0]}, {sT[0]}, 6")
    e(f"v_lshrrev_b32 {vT0}, 4, {vLane}")
    e(f"v_lshlrev_b32 {vT0}, 13, {vT0}")
    e(f"v_bfe_u32 {vT1}, {vLane}, 2, 2")
    e(f"v_lshlrev_b32 {vT1}, 4, {vT1}")
    e(f"v_add3_u32 {v(PUB+8)}, {vT0}, {vT1}, {sT[0]}")
    e(f"s_add_u32 {sT[0]}, {sT[0]}, {4*8192}")
    e(f"v_add_u32 {v(PUB+9)}, {sT[0]}, {vT1}")
    e(f"v_add_u32 {v(PUB+10)}, {sOOB}, {v(PUB+8)}")
    e(f"v_add_u32 {v(PUB+11)}, {sOOB}, {v(PUB+9)}")
    e(f"s_mov_b32 {sFfnOff}, {WS_FFN}")
    e(f"s_mov_b32 {sAttOff}, {WS_ATT}")
def ffn_block():
    cm("FFN second projection: 5 tiles, K=16")
    for t in range(5):
        e(f"v_mfma_f32_16x16x16_bf16 {vr(FD+4*t,4)}, {vr(vHop,2)}, {vr(W20+2*t,2)}, 0")
    pub_addr()
    nop(2)
    FR0 = "v19"
    e(f"v_mov_b32 {FR0}, {v(FD)}")
    for g in range(1, 4):
        e(f"v_mov_b32_dpp {FR0}, {v(FD+4*g)} quad_perm:[0,1,2,3] row_mask:{1<<g:#x} bank_mask:0xf")
    nop(2)
    publish(FR0, v(FD+16), v(PUB+10), v(PUB+11), sFfnOff, PUB)
def pv_block(younger, nda=0):
    cm("PV")
    for i in range(8): e(f"v_mov_b32 {v(vAcc+i)}, 0")
    for pr in range(8):
        s0, s1 = 2*pr, 2*pr + 1
        extra = 0
        if nda:
            pos = {1: [12], 2: [11, 13], 3: [10, 12, 14], 4: [10, 11, 13, 14], 5: [9, 10, 12, 13, 14]}[nda]
            extra = sum(1 for p in pos if p >= s1)
        e(f"s_waitcnt vmcnt({15 - s1 + younger + extra})")
        A = V0 + 4*s0; B = V0 + 4*s1
        for i in range(4):
            e(f"v_perm_b32 {v(vPT+2*i)}, {v(B+i)}, {v(A+i)}, {sPLo}")
            e(f"v_perm_b32 {v(vPT+2*i+1)}, {v(B+i)}, {v(A+i)}, {sPHi}")
        P = vP01 if (s0 & 3) == 0 else vP23
        for i in range(8):
            e(f"v_dot2c_f32_bf16_dpp {v(vAcc+i)}, {P}, {v(vPT+i)} row_newbcast:{4*(s0>>2)} row_mask:0xf bank_mask:0xf")
    e(f"s_mul_i32 {sT[0]}, {sW}, {O_STRIDE}")
    e(f"v_and_b32 {vT0}, 15, {vLane}")
    e(f"v_lshrrev_b32 {vT1}, 4, {vLane}")
    for i in range(4): e(f"v_permlane32_swap_b32 {v(vAcc+i)}, {v(vAcc+4+i)}")
    e(f"v_lshlrev_b32 {vT1}, 2, {vT1}")
    for i in range(4): e(f"v_add_f32 {v(vAcc+i)}, {v(vAcc+i)}, {v(vAcc+4+i)}")
    e(f"v_lshl_add_u32 {vT0}, {vT0}, 4, {vT1}")
    e(f"v_add_u32 {vT0}, {sT[0]}, {vT0}")
    e(f"v_permlane16_swap_b32 {v(vAcc)}, {v(vAcc+2)}")
    e(f"v_permlane16_swap_b32 {v(vAcc+1)}, {v(vAcc+3)}")
    nop(1)
    e(f"v_add_f32 {v(vAcc)}, {v(vAcc)}, {v(vAcc+2)}")
    e(f"v_add_f32 {v(vAcc+1)}, {v(vAcc+1)}, {v(vAcc+3)}")
    e(f"v_cvt_pk_bf16_f32 {v(vAcc)}, {v(vAcc)}, {v(vAcc+1)}")
    e(f"ds_write_b32 {vT0}, {v(vAcc)} offset:{LDS_O}")
RF, RM, RA = 80, 88, 96
vRA, vRM, vRW, vRG = "v104", "v105", 106, "v110"
sRedOn = sT[8]
mLo, mHi = "s[20:21]", "s[22:23]"
def red_loads_fm(masked=False):
    if masked: e(f"s_mov_b64 exec, {mLo}")
    e(f"buffer_load_dwordx4 {vr(RF,4)}, {vRA}, {S_WS}, {sFfnOff} offen sc1")
    e(f"buffer_load_dwordx4 {vr(RM,4)}, {vRM}, {S_WS}, 0 offen sc1")
    if masked: e(f"s_mov_b64 exec, {mHi}")
    e(f"buffer_load_dwordx4 {vr(RF+4,4)}, {vRA}, {S_WS}, {sFfnOff} offen offset:1024 sc1")
    e(f"buffer_load_dwordx4 {vr(RM+4,4)}, {vRM}, {S_WS}, 0 offen offset:1024 sc1")
    if masked: e("s_mov_b64 exec, -1")
def red_loads_a(masked=False):
    if masked: e(f"s_mov_b64 exec, {mLo}")
    e(f"buffer_load_dwordx4 {vr(RA,4)}, {vRA}, {S_WS}, {sAttOff} offen sc1")
    if masked: e(f"s_mov_b64 exec, {mHi}")
    e(f"buffer_load_dwordx4 {vr(RA+4,4)}, {vRA}, {S_WS}, {sAttOff} offen offset:1024 sc1")
    if masked: e("s_mov_b64 exec, -1")

def ml_publish(wave, skip):
    e(f"s_cmp_eq_u32 {sW}, {wave}")
    e(f"s_cbranch_scc0 {skip}")
    MLR = 80
    e("v_mov_b32 v96, 0")
    e(f"ds_read_b128 {vr(MLR,4)}, v96 offset:{LDS_M}")
    e(f"ds_read_b128 {vr(MLR+4,4)}, v96 offset:{LDS_M+16}")
    e(f"ds_read_b128 {vr(MLR+8,4)}, v96 offset:{LDS_L}")
    e(f"ds_read_b128 {vr(MLR+12,4)}, v96 offset:{LDS_L+16}")
    e(f"s_lshl_b32 {sT[0]}, {sB}, 7")
    e(f"s_add_u32 {sT[0]}, {sT[0]}, {sP}")
    e(f"s_lshl_b32 {sT[0]}, {sT[0]}, 4")
    e(f"s_add_u32 {sT[0]}, {sT[0]}, {WS_ML}")
    e("s_waitcnt lgkmcnt(0)")
    for r in range(8): e(f"v_sub_f32 {v(MLR+r)}, {v(MLR+r)}, {v(MA)}")
    for r in range(8): e(f"v_exp_f32 {v(MLR+r)}, {v(MLR+r)}")
    e(f"v_mul_f32 v97, {v(MLR)}, {v(MLR+8)}")
    for r in range(1, 8): e(f"v_fmac_f32 v97, {v(MLR+r)}, {v(MLR+8+r)}")
    e(f"v_mov_b32 {v(MLR)}, {v(MA)}")
    e(f"v_mov_b32 {v(MLR+1)}, v97")
    e(f"v_mov_b32 {v(MLR+2)}, {vNonce}")
    e(f"v_mov_b32 {v(MLR+3)}, {vNonce}")
    e(f"v_mov_b32 v96, {sT[0]}")
    e("s_mov_b64 exec, 1")
    e(f"buffer_store_dwordx4 {vr(MLR,4)}, v96, {S_WS}, 0 offen sc1")
    e("s_mov_b64 exec, -1")
    stamp("ML pub")
MA = 16

e(f"s_cmp_ge_u32 {sW}, 4")
e("s_cbranch_scc1 L_B3")
def d3(i):
    hv, u = divmod(i, 5)
    e(f"s_add_u32 m0, {sT[6]}, {LDS_WO + hv*4*5120 + u*1024}")
    e("s_nop 0")
    e(f"buffer_load_dwordx4 {vDM[u]}, {S_WO}, {sT[5] if hv == 0 else sT[7]} offen{WP} lds")
def d3_scalars():
    e(f"s_and_b32 {sT[6]}, {sW}, 3")
    e(f"s_mul_i32 {sT[6]}, {sT[6]}, 5120")
    e(f"s_mul_i32 {sT[5]}, {sH}, 163840")
    e(f"s_add_u32 {sT[5]}, {sT[5]}, {sT[6]}")
    e(f"s_add_u32 {sT[5]}, {sT[5]}, {3*40960}")
    e(f"s_add_u32 {sT[7]}, {sT[5]}, {4*5120}")
if a.r2by == "A":
    d3_scalars()
    for t in range(8, 16): v_load(t)
    for i in range(10): d3(i)
    e("s_waitcnt vmcnt(26)")
else:
    d3_scalars()
    pos = {1: [12], 2: [11, 13], 3: [10, 12, 14], 4: [10, 11, 13, 14], 5: [9, 10, 12, 13, 14], 0: []}[a.nda]
    di = 0
    for t in range(8, 16):
        v_load(t)
        if t in pos:
            d3(di); di += 1
    e(f"s_waitcnt vmcnt({16 + a.nda})")
stamp("A V issued")
qk_softmax()
stamp("A softmax")
ffn_block()
stamp("A ffn pub")
pv_block(12 if a.r2by == "A" else 2, a.nda if a.r2by == "B" else 0)
stamp("A PV done")
if a.prio: e(f"s_setprio {a.prio}")
e("s_branch L_J4")
lab("L_B3")
qk_softmax()
stamp("B softmax")
pv_block(0)
stamp("B PV done")
ffn_block()
stamp("B ffn pub")
if a.r2by == "B":
    d3_scalars()
    for i in range(a.nda, 10): d3(i)
    stamp("B r2 issued")
lab("L_J4")
e(f"v_and_b32 {vT0}, 15, {vLane}")
e(f"v_mul_u32_u24 {vT0}, {O_STRIDE}, {vT0}")
e(f"v_lshrrev_b32 {vT1}, 4, {vLane}")
e(f"v_lshl_add_u32 {vT0}, {vT1}, 4, {vT0}")
e(f"v_and_b32 {vT1}, 1, {vT1}")
e(f"v_lshlrev_b32 {vT1}, 4, {vT1}")
e("v_mov_b32 v8, 0")
e("s_waitcnt lgkmcnt(0)")
e("s_barrier")
stamp("O barrier")
OA = 64
DA = 32
for s_ in range(4):
    e(f"ds_read_b128 {vr(OA+4*s_,4)}, {vT0} offset:{LDS_O + s_*64}")
e(f"ds_read_b128 {vr(MA,4)}, v8 offset:{LDS_M}")
e(f"ds_read_b128 {vr(MA+4,4)}, v8 offset:{LDS_M+16}")
e(f"ds_read_b128 {vr(MA+8,4)}, {vT1} offset:{LDS_M}")
if not a.r2last: tr_reads([(3, 0)])
nl = 7 if a.r2last else 17
for s_ in range(4):
    if s_ == 3:
        ml_publish(a.mlwave, "L_noml")
        lab("L_noml")
    if s_ == 3 and a.r2last:
        assert a.r2by == "B" and a.nda == 0
        e(f"s_cmp_ge_u32 {sW}, 4")
        e("s_cbranch_scc0 L_noDwait")
        e("s_waitcnt vmcnt(0)")
        lab("L_noDwait")
        e("s_barrier")
        stamp("Rc")
        tr_reads([(3, 0)])
        e("s_waitcnt lgkmcnt(0)")
    if s_ < 3: e(f"s_waitcnt lgkmcnt({min(15, nl - 1 - s_)})")
    for t in range(5):
        c = "0" if s_ == 0 else vr(DA+4*t,4)
        e(f"v_mfma_f32_16x16x32_bf16 {vr(DA+4*t,4)}, {vr(OA+4*s_,4)}, {vr(WO0+(s_*5+t)*4,4)}, {c}")
    if s_ == 1:
        e(f"s_waitcnt lgkmcnt({nl - 7})")
        e(f"v_max3_f32 {v(MA)}, {v(MA)}, {v(MA+1)}, {v(MA+2)}")
        e(f"v_max3_f32 {v(MA+3)}, {v(MA+3)}, {v(MA+4)}, {v(MA+5)}")
        e(f"v_max3_f32 {v(MA)}, {v(MA)}, {v(MA+6)}, {v(MA+7)}")
        e(f"v_max_f32 {v(MA)}, {v(MA)}, {v(MA+3)}")
    if s_ == 2:
        for r in range(4): e(f"v_sub_f32 {v(MA+8+r)}, {v(MA+8+r)}, {v(MA)}")
        for r in range(4): e(f"v_exp_f32 {v(MA+8+r)}, {v(MA+8+r)}")
        if not a.r2last: e("s_waitcnt lgkmcnt(0)")
nop(4)
T = [DA+4*t for t in range(5)]
for t in range(5):
    e(f"v_mul_f32 {v(T[t])}, {v(T[t])}, {v(MA+8)}")
for r in range(1, 4):
    for t in range(5):
        e(f"v_fmac_f32 {v(T[t])}, {v(T[t]+r)}, {v(MA+8+r)}")
e(f"v_mov_b32 {v(T[4]+1)}, {v(T[4])}")
e(f"v_permlane32_swap_b32 {v(T[0])}, {v(T[2])}")
e(f"v_permlane32_swap_b32 {v(T[1])}, {v(T[3])}")
e(f"v_permlane16_swap_b32 {v(T[4])}, {v(T[4]+1)}")
e(f"v_add_f32 {v(T[0])}, {v(T[0])}, {v(T[2])}")
e(f"v_add_f32 {v(T[1])}, {v(T[1])}, {v(T[3])}")
e(f"v_add_f32 {v(T[4])}, {v(T[4])}, {v(T[4]+1)}")
nop(1)
e(f"v_permlane16_swap_b32 {v(T[0])}, {v(T[1])}")
nop(1)
e(f"v_add_f32 {v(T[0])}, {v(T[0])}, {v(T[1])}")
nop(2)
publish(v(T[0]), v(T[4]), v(PUB+8), v(PUB+9), sAttOff, PUB)
stamp("att pub")
e(f"s_cmp_eq_u32 {sIsRed}, 0")
e("s_cbranch_scc1 L_fin")
RA, RF, RM = 64, 68, 72
e(f"s_and_b32 {sT[0]}, s2, 127")
e(f"s_mul_i32 {sT[1]}, {sB}, 40")
e(f"s_add_u32 {sT[1]}, {sT[1]}, {sT[0]}")
e(f"s_lshl_b32 {sT[1]}, {sT[1]}, 13")
e(f"s_lshl_b32 {sT[2]}, {sW}, 10")
e(f"s_add_u32 {sT[1]}, {sT[1]}, {sT[2]}")
e(f"v_lshl_add_u32 v76, {vLane}, 4, {sT[1]}")
e(f"s_lshl_b32 {sT[2]}, {sB}, 11")
e(f"s_lshl_b32 {sT[3]}, {sW}, 8")
e(f"s_add_u32 {sT[2]}, {sT[2]}, {sT[3]}")
e(f"s_add_u32 {sT[2]}, {sT[2]}, {WS_ML}")
e(f"v_lshrrev_b32 {vT0}, 2, {vLane}")
e(f"v_lshl_add_u32 v77, {vT0}, 4, {sT[2]}")
e(f"s_mov_b32 {sT[4]}, {WS_ATT}")
e(f"s_mov_b32 {sT[5]}, {WS_FFN}")
e(f"s_lshl_b32 {sT[6]}, {sW}, 4")
e(f"v_add_u32 {vT0}, {sT[6]}, {vT0}")
e(f"s_movk_i32 {sT[7]}, 108")
e(f"v_cmp_gt_u32 s[14:15], {sT[7]}, {vT0}")
e(f"s_mov_b32 {sCnt}, 0")
lab("L_rpoll1")
e(f"buffer_load_dwordx4 {vr(RF,4)}, v76, {S_WS}, {sT[5]} offen sc1")
e(f"buffer_load_dwordx4 {vr(RM,4)}, v77, {S_WS}, 0 offen sc1")
e(f"buffer_load_dwordx4 {vr(RA,4)}, v76, {S_WS}, {sT[4]} offen sc1")
e("s_waitcnt vmcnt(1)")
check4(RF, vT0, vT1, "vcc")
e(f"v_cmp_ne_u32 s[12:13], {v(RM+2)}, {vNonce}")
nop(1)
e("s_and_b64 vcc, vcc, s[14:15]")
e("s_or_b64 vcc, vcc, s[12:13]")
nop(1)
e("s_cbranch_vccz L_rok1")
e(f"s_add_u32 {sCnt}, {sCnt}, 1")
e(f"s_cmp_gt_u32 {sCnt}, 20000")
e("s_cbranch_scc1 L_rok1")
e("s_waitcnt vmcnt(0)")
e(f"s_sleep {a.sleep}")
e("s_branch L_rpoll1")
lab("L_rok1")
e(f"v_mov_b32 {vT0}, {LDS_G}")
e(f"ds_read_b32 v78, {vT0}")
e(f"v_mov_b32 {vT1}, {v(RM)}")
nop(1)
for ctl in ("row_ror:4", "row_ror:8"):
    e(f"v_max_f32_dpp {vT1}, {vT1}, {vT1} {ctl} row_mask:0xf bank_mask:0xf")
    nop(2)
e(f"v_sub_f32 {v(RM)}, {v(RM)}, {vT1}")
e(f"v_exp_f32 {v(RM)}, {v(RM)}")
nop(1)
e(f"v_mul_f32 {v(RM+1)}, {v(RM+1)}, {v(RM)}")
nop(2)
for ctl in ("row_ror:4", "row_ror:8"):
    e(f"v_add_f32_dpp {v(RM+1)}, {v(RM+1)}, {v(RM+1)} {ctl} row_mask:0xf bank_mask:0xf")
    nop(2)
e(f"v_rcp_f32 {v(RM+1)}, {v(RM+1)}")
e("s_waitcnt lgkmcnt(0)")
e(f"v_mul_f32 {v(RM)}, {v(RM)}, v78")
e(f"v_sub_f32 v78, 1.0, v78")
e(f"v_mul_f32 {v(RM)}, {v(RM)}, {v(RM+1)}")
for k in range(4):
    e(f"v_and_b32 {v(RF+k)}, 0xffffff00, {v(RF+k)}")
for k in range(4):
    e(f"v_cndmask_b32 {v(RF+k)}, 0, {v(RF+k)}, s[14:15]")
for k in range(4):
    e(f"v_mul_f32 {v(RF+k)}, v78, {v(RF+k)}")
e(f"s_mov_b32 {sCnt}, 0")
for _ in range(a.depth - 1):
    e(f"buffer_load_dwordx4 {vr(RA,4)}, v76, {S_WS}, {sT[4]} offen sc1")
lab("L_rpoll2")
e(f"s_waitcnt vmcnt({a.depth - 1})")
check4(RA, vT0, vT1, "s[20:21]")
nop(1)
e("s_or_b64 s[12:13], s[20:21], s[20:21]")
e("s_cbranch_scc0 L_rok2")
e(f"s_add_u32 {sCnt}, {sCnt}, 1")
e(f"s_cmp_gt_u32 {sCnt}, 40000")
e("s_cbranch_scc1 L_rok2")
if a.sleep: e(f"s_sleep {a.sleep}")
if a.mask: e("s_mov_b64 exec, s[20:21]")
e(f"buffer_load_dwordx4 {vr(RA,4)}, v76, {S_WS}, {sT[4]} offen sc1")
if a.mask: e("s_mov_b64 exec, -1")
e("s_branch L_rpoll2")
lab("L_rok2")
stamp("polled")
stampval("final retries", sCnt)
for k in range(4):
    e(f"v_and_b32 {v(84+k)}, 0xffffff00, {v(RA+k)}")
for k in range(4):
    e(f"v_fmac_f32 {v(RF+k)}, {v(RM)}, {v(84+k)}")
nop(1)
for ctl in ("row_ror:4", "row_ror:8"):
    for k in range(4):
        e(f"v_add_f32_dpp {v(RF+k)}, {v(RF+k)}, {v(RF+k)} {ctl} row_mask:0xf bank_mask:0xf")
nop(1)
e(f"v_permlane32_swap_b32 {v(RF)}, {v(RF+2)}")
e(f"v_permlane32_swap_b32 {v(RF+1)}, {v(RF+3)}")
nop(1)
e(f"v_add_f32 {v(RF)}, {v(RF)}, {v(RF+2)}")
e(f"v_add_f32 {v(RF+1)}, {v(RF+1)}, {v(RF+3)}")
nop(1)
e(f"v_permlane16_swap_b32 {v(RF)}, {v(RF+1)}")
e(f"v_and_b32 {vT0}, 3, {vLane}")
e(f"v_lshrrev_b32 {vT1}, 4, {vLane}")
e(f"v_lshl_add_u32 {vT0}, {vT0}, 2, {vT1}")
e(f"s_lshl_b32 {sT[0]}, {sW}, 2")
e(f"v_add_f32 {v(RF)}, {v(RF)}, {v(RF+1)}")
e(f"v_lshl_add_u32 {vT0}, {vT0}, 5, {sT[0]}")
e(f"ds_write_b32 {vT0}, {v(RF)} offset:{LDS_RED}")
e("s_waitcnt lgkmcnt(0)")
e("s_barrier")
e(f"s_cmp_eq_u32 {sW}, 0")
e("s_cbranch_scc0 L_fin")
e(f"v_and_b32 {vT0}, 15, {vLane}")
e(f"v_lshlrev_b32 {vT1}, 5, {vT0}")
FS = 80
e(f"ds_read_b128 {vr(FS,4)}, {vT1} offset:{LDS_RED}")
e(f"ds_read_b128 {vr(FS+4,4)}, {vT1} offset:{LDS_RED+16}")
e(f"s_and_b32 {sT[0]}, s2, 127")
e(f"s_lshl_b32 {sT[0]}, {sT[0]}, 5")
e(f"s_mul_i32 {sT[1]}, {sB}, 1280")
e(f"s_add_u32 {sT[0]}, {sT[0]}, {sT[1]}")
e(f"v_lshl_add_u32 {vT0}, {vT0}, 1, {sT[0]}")
e("s_waitcnt lgkmcnt(0)")
for k in range(4): e(f"v_add_f32 {v(FS+k)}, {v(FS+k)}, {v(FS+4+k)}")
e(f"v_add_f32 {v(FS)}, {v(FS)}, {v(FS+1)}")
e(f"v_add_f32 {v(FS+2)}, {v(FS+2)}, {v(FS+3)}")
e(f"v_add_f32 {v(FS)}, {v(FS)}, {v(FS+2)}")
e(f"v_cvt_pk_bf16_f32 {v(FS)}, {v(FS)}, {v(FS)}")
e("s_mov_b32 exec_lo, 0xffff")
e("s_mov_b32 exec_hi, 0")
e(f"buffer_store_short {v(FS)}, {vT0}, {S_OUT}, 0 offen")
e("s_cmp_eq_u32 s2, 0")
e("s_cbranch_scc0 L_noepoch")
e("s_mov_b32 exec_lo, 1")
e(f"v_mov_b32 {vT0}, {WS_EPOCH}")
e(f"buffer_store_dword {vNonce}, {vT0}, {S_WS}, 0 offen")
lab("L_noepoch")
e("s_mov_b64 exec, -1")
lab("L_fin")
if a.probe:
    e("s_cmp_eq_u32 s2, 0")
    e("s_cbranch_scc0 L_tfix_done")
    e(f"s_cmp_eq_u32 {sW}, {a.probewave}")
    e("s_cbranch_scc0 L_tfix_done")
    e("s_mul_i32 s97, s97, 10")
    e(f"s_add_u32 s96, s100, {a.tfix}")
    e("s_add_u32 s96, s96, s97")
    lab("L_tfix")
    e("s_memrealtime s[98:99]")
    e("s_waitcnt lgkmcnt(0)")
    e("s_sub_u32 s97, s98, s96")
    e("s_cmp_lt_i32 s97, 0")
    e("s_cbranch_scc1 L_tfix")
    lab("L_tfix_done")
stamp("end")
if a.prof:
    e(f"s_lshl_b32 {sT[0]}, s2, 3")
    e(f"s_add_u32 {sT[0]}, {sT[0]}, {sW}")
    e(f"s_lshl_b32 {sT[0]}, {sT[0]}, 7")
    e(f"s_add_u32 {sT[0]}, {sT[0]}, {WS_PROF}")
    e(f"v_add_u32 {vT0}, {sT[0]}, {vL4}")
    e("s_mov_b32 exec_lo, -1")
    e("s_mov_b32 exec_hi, 0")
    e(f"buffer_store_dword v255, {vT0}, {S_WS}, 0 offen")
if a.dbgspan:
    e("s_cmp_ge_u32 s2, 8")
    e("s_cbranch_scc1 L_end")
    e(f"s_cmp_lg_u32 {sW}, 0")
    e("s_cbranch_scc1 L_end")
    e("s_mov_b32 s96, s100")
    e("s_memrealtime s[100:101]")
    e("s_load_dwordx2 s[12:13], s[0:1], 80")
    e("s_waitcnt lgkmcnt(0)")
    e("v_mov_b32 v20, s96")
    e("v_mov_b32 v21, s100")
    e("s_lshl_b32 s96, s2, 3")
    e("v_mov_b32 v22, s96")
    e("s_mov_b32 exec_lo, 1")
    e("s_mov_b32 exec_hi, 0")
    e("global_store_dwordx2 v22, v[20:21], s[12:13]")
lab("L_end")
e("s_endpgm")
lab("L_codeend")


L += ['.section .rodata,"a"', ".p2align 6", f".amdhsa_kernel {NAME}",
      "  .amdhsa_next_free_vgpr 256", "  .amdhsa_next_free_sgpr 102", "  .amdhsa_accum_offset 256",
      "  .amdhsa_group_segment_fixed_size 0", "  .amdhsa_kernarg_size 96", "  .amdhsa_user_sgpr_count 2",
      "  .amdhsa_user_sgpr_kernarg_segment_ptr 1", "  .amdhsa_system_sgpr_workgroup_id_x 1",
      "  .amdhsa_float_denorm_mode_32 3", ".end_amdhsa_kernel"]
text = "\n".join(L) + "\n"
if a.codepf:
    import subprocess, tempfile, os, re
    def subst(t, nbytes):
        chunks = (nbytes + 1023) // 1024
        return (t.replace("CODE_MAGIC", str(0x10000 // chunks + 1)).replace("CODE_CHUNKS", str(0x1000 + chunks) if nbytes == 0 else str(chunks))
                 .replace("CODE_LAST", str(((nbytes - 16) & ~15) if nbytes else 0x12345)))
    with tempfile.TemporaryDirectory() as d:
        src = os.path.join(d, "k.s"); obj = os.path.join(d, "k.o")
        t0 = text.replace("CODE_MAGIC", "0x12345").replace("CODE_CHUNKS", "0x12345").replace("CODE_LAST", "0x12345")
        open(src, "w").write(t0)
        subprocess.run(["clang", "-x", "assembler", "-target", "amdgcn-amd-amdhsa", "-mcpu=gfx950", "-c", src, "-o", obj], check=True)
        nm = subprocess.run(["llvm-objdump", "-d", "--mcpu=gfx950", obj], capture_output=True, text=True).stdout
        last = re.findall(r"// ([0-9A-F]{12}):", nm)[-1]
        nbytes = int(last, 16) + 4
    chunks = (nbytes + 1023) // 1024
    magic = 0x10000 // chunks + 1
    assert all(((i * magic) >> 16) == i // chunks for i in range(32))
    text = text.replace("CODE_MAGIC", f"{magic:#x}").replace("CODE_LAST", f"{(nbytes - 16) & ~15:#x}")
    text = text.replace("CODE_CHUNKS", str(chunks))
open(a.o, "w").write(text)
if a.prof:
    open(a.o + ".stamps", "w").write("\n".join(PROF_NAMES) + "\n")
```

```python
import argparse, sys

ap = argparse.ArgumentParser()
ap.add_argument("-o", default="kernel.s")
ap.add_argument("--prof", type=int, default=0)
ap.add_argument("--kvpol", default="nt")
ap.add_argument("--wpol", default="nt")
ap.add_argument("--dump", type=int, default=0)
ap.add_argument("--sleep", type=int, default=1)
ap.add_argument("--dper", type=int, default=2)
ap.add_argument("--dperb", type=int, default=2)
ap.add_argument("--kfirst", type=int, default=7)
ap.add_argument("--r2last", type=int, default=1)
ap.add_argument("--r2by", default="B")
ap.add_argument("--nda", type=int, default=0)
ap.add_argument("--probe", default="")
ap.add_argument("--probewave", type=int, default=0)
ap.add_argument("--outpol", default="")
ap.add_argument("--rperm", type=int, default=0)
ap.add_argument("--bord", default="FD")
ap.add_argument("--tfix", type=int, default=0)
ap.add_argument("--codepf", type=int, default=0)
ap.add_argument("--codepf_wave", type=int, default=4)
ap.add_argument("--mlwave", type=int, default=0)
ap.add_argument("--depth", type=int, default=1)
ap.add_argument("--sleep1", type=int, default=4)
ap.add_argument("--mask", type=int, default=0)
ap.add_argument("--prio", type=int, default=1)
ap.add_argument("--tlbwarm", type=int, default=0)
ap.add_argument("--qpol", default="sc1")
ap.add_argument("--mix2", type=int, default=0)
ap.add_argument("--dbgspan", type=int, default=0)
a = ap.parse_args()

NAME = "gated_mix__sliding_block_cached__dense_activation_silu__decode_kernel"
L = []
def e(s): L.append("    " + s)
def lab(s): L.append(s + ":")
def cm(s): L.append("    ; " + s)
KVP = (" " + a.kvpol) if a.kvpol else ""
WP = (" " + a.wpol) if a.wpol else ""

WS_EPOCH = 0
WS_QH = 4096
QH_RB = 768
WS_ATT = WS_QH + 32 * 8 * 2 * QH_RB
WS_FFN = WS_ATT + 2 * 40 * 128 * 64
WS_ML = WS_FFN + 2 * 40 * 128 * 64
WS_END = WS_ML + 2 * 128 * 16
WS_PROF = 4 << 20
WS_DUMP = 8 << 20
WS_SIZE = 16 << 20

LDS_P = 0
LDS_O = LDS_P + 4 * 1536
O_STRIDE = 272
LDS_Q = LDS_O + 16 * O_STRIDE
LDS_H = LDS_Q + 256
LDS_M = LDS_H + 32
LDS_L = LDS_M + 32
LDS_G = LDS_L + 32
LDS_CNT = LDS_G + 16
LDS_CNT2 = LDS_G + 4
LDS_NONCE = LDS_G + 32
LDS_RED = LDS_G + 48
LDS_W2 = (LDS_RED + 512 + 255) // 256 * 256
LDS_WO = LDS_W2 + 20480
LDS_END = LDS_WO + 3 * 40960
LDS_SIZE = (LDS_END + 255) // 256 * 256

sWG = "s2"
S_K, S_V, S_WQ, S_WO, S_W1, S_W2, S_WS, S_OUT = [f"s[{i}:{i+3}]" for i in range(40, 72, 4)]
def srd(n): return {"K": 40, "V": 44, "WQ": 48, "WO": 52, "W1": 56, "W2": 60, "WS": 64, "OUT": 68}[n]
sW, sH, sR, sB, sJ, sP = "s3", "s4", "s5", "s6", "s7", "s8"
sNonce = "s9"
sKO = [f"s{72+i}" for i in range(4)]
sSel = [f"s{76+i}" for i in range(4)]
sPLo, sPHi = "s80", "s81"
sT = [f"s{82+i}" for i in range(10)]
sOOB = "s92"
sIsRed = "s93"
sCnt = "s94"
sWOoff = "s95"
sExec = "s[96:97]"
sChk0, sChk1 = "s98", "s99"
sLdsW = "s10"
sC = "s11"

vLane, vL4, vKV = "v0", "v1", "v2"
vTR = [f"v{3+i}" for i in range(5)]
vDM = [f"v{8+i}" for i in range(5)]
vNonce, vT0, vT1 = "v13", "v14", "v15"
K0, V0, WO0, W20 = 16, 80, 144, 224
vQ = 234
vAcc = 238
vP01, vP23 = "v246", "v247"
vPT = 64
vHop = 250
vW2A = 8
def v(i): return f"v{i}"
def vr(i, n): return f"v[{i}:{i+n-1}]"

PROF_SLOTS = 32
prof_n = [0]
def stamp(name):
    if a.probe and name == a.probe:
        e("s_memrealtime s[96:97]")
        e("s_waitcnt lgkmcnt(0)")
        e("s_sub_u32 s97, s96, s100")
    return stamp_(name)
def stamp_(name):
    if not a.prof: return
    if a.prof == 2 and name not in ("entry", "O barrier", "end"): return
    if name in ("poll addr", "poll issued", "poll 1st ret", "poll 1 issued", "A kernarg", "B kernarg"): return
    i = prof_n[0]; prof_n[0] += 1
    assert i < PROF_SLOTS
    cm(f"stamp {i}: {name}")
    e("s_memrealtime s[100:101]")
    e("s_waitcnt lgkmcnt(0)")
    e(f"v_writelane_b32 v255, s100, {i}")
    PROF_NAMES.append(name)
PROF_NAMES = []

def stampval(name, sreg):
    if a.prof != 1: return
    i = prof_n[0]; prof_n[0] += 1
    assert i < PROF_SLOTS
    e(f"v_writelane_b32 v255, {sreg}, {i}")
    PROF_NAMES.append("#" + name)

def nop(n):
    while n > 0:
        k = min(n, 16); e(f"s_nop {k-1}"); n -= k

def tag4(regs):
    for k in range(4):
        e(f"v_perm_b32 {regs[k]}, {regs[k]}, {vNonce}, {sSel[k]}")

def check4(base, tmp0, tmp1, dst):
    e(f"v_perm_b32 {tmp0}, {v(base+1)}, {v(base)}, {sChk0}")
    e(f"v_perm_b32 {tmp1}, {v(base+3)}, {v(base+2)}, {sChk0}")
    e(f"v_perm_b32 {tmp0}, {tmp1}, {tmp0}, {sChk1}")
    e(f"v_cmp_ne_u32 {dst}, {tmp0}, {vNonce}")

L.append(f"; @launch grid=(256,1,1) block=(512,1,1) lds={LDS_SIZE}")
L.append('.amdgcn_target "amdgcn-amd-amdhsa--gfx950"')
L += [".text", f".globl {NAME}", ".p2align 8", f".type {NAME},@function", f"{NAME}:"]

PQ, PH = V0, V0 + 20
PACC = V0 + 40
PG = WO0
W2D = 238
sDMA = ["s36", "s37", sT[4], sT[5]]
sW2g, sW2l = sT[6], sT[9]
def mk_srd(name, ptr, size):
    d = srd(name)
    e(f"s_mov_b32 s{d}, s{ptr}")
    e(f"s_and_b32 s{d+1}, s{ptr+1}, 0xffff")
    e(f"s_mov_b32 s{d+2}, {size}")
    e(f"s_mov_b32 s{d+3}, 0x20000")
def k_load(t):
    e(f"buffer_load_dwordx4 {vr(K0+4*t,4)}, {vKV}, {S_K}, {sKO[t//4]} offen offset:{(t%4)*1024}{KVP}")
def v_load(t):
    e(f"buffer_load_dwordx4 {vr(V0+4*t,4)}, {vKV}, {S_V}, {sKO[t//4]} offen offset:{(t%4)*1024}{KVP}")
def lane_consts():
    e(f"s_mul_i32 {sLdsW}, {sW}, 5120")
    e(f"s_mul_i32 {sWOoff}, {sH}, 163840")
    e(f"s_add_u32 {sWOoff}, {sWOoff}, {sLdsW}")
    e(f"s_lshr_b32 s15, {sW}, 1")
    e(f"s_and_b32 s15, s15, 1")
    e(f"s_lshl_b32 s15, s15, 3")
    for u in range(5):
        e(f"v_add_u32 {vT0}, {64*u}, {vLane}")
        e(f"v_mul_u32_u24 {vT1}, 205, {vT0}")
        e(f"v_lshrrev_b32 {vT1}, 14, {vT1}")
        e(f"v_mul_u32_u24 {vDM[u]}, 80, {vT1}")
        e(f"v_sub_u32 {vT0}, {vT0}, {vDM[u]}")
        e(f"v_lshl_add_u32 {vDM[u]}, {vT1}, 1, s15")
        e(f"v_xor_b32 {vT0}, {vT0}, {vDM[u]}")
        e(f"v_lshlrev_b32 {vT0}, 4, {vT0}")
        e(f"v_mul_u32_u24 {vT1}, 1280, {vT1}")
        e(f"v_add_u32 {vDM[u]}, {vT0}, {vT1}")
    e(f"s_lshl_b32 s15, {sW}, 2")
    for u in range(3):
        d = v(W2D+u)
        e(f"v_add_u32 {vT0}, {64*u}, {vLane}")
        e(f"v_mul_u32_u24 {vT1}, 205, {vT0}")
        e(f"v_lshrrev_b32 {vT1}, 14, {vT1}")
        e(f"v_mul_u32_u24 {d}, 80, {vT1}")
        e(f"v_sub_u32 {vT0}, {vT0}, {d}")
        e(f"v_lshl_add_u32 {d}, {vT1}, 1, s15")
        e(f"v_and_b32 {d}, 14, {d}")
        e(f"v_xor_b32 {vT0}, {vT0}, {d}")
        e(f"v_lshlrev_b32 {vT0}, 4, {vT0}")
        e(f"v_mul_u32_u24 {vT1}, 1280, {vT1}")
        e(f"v_add_u32 {d}, {vT0}, {vT1}")
def dma_scalars():
    for ks in range(4):
        e(f"s_add_u32 {sDMA[ks]}, {sWOoff}, {ks*40960}")
    e(f"s_mul_i32 {sW2g}, {sP}, {16*1280}")
    e(f"s_mul_i32 {sW2l}, {sW}, 2560")
    e(f"s_add_u32 {sW2g}, {sW2g}, {sW2l}")
def dma_list():
    out = []
    for ks in range(3):
        for u in range(5):
            out.append([f"s_add_u32 m0, {sLdsW}, {LDS_WO + ks*40960 + u*1024}", "s_nop 0",
                        f"buffer_load_dwordx4 {vDM[u]}, {S_WO}, {sDMA[ks]} offen{WP} lds"])
    for u in range(3):
        g = [f"s_add_u32 m0, {sW2l}, {LDS_W2 + u*1024}"]
        g += ["s_mov_b32 exec_hi, 0"] if u == 2 else ["s_nop 0"]
        g += [f"buffer_load_dwordx4 {v(W2D+u)}, {S_W2}, {sW2g} offen{WP} lds"]
        if u == 2: g += ["s_mov_b32 exec_hi, -1"]
        out.append(g)
    return out
def late_srds(skipk=False):
    if not skipk: mk_srd("K", 18, 134217728)
    mk_srd("V", 20, 134217728)
    mk_srd("WO", 24, 4096 * 640 * 2)
    mk_srd("W2", 30, "s13")
    mk_srd("WS", 38, WS_SIZE)
    mk_srd("OUT", 34, 2560)
    if not skipk: e(f"s_load_dword {sNonce}, s[38:39], {WS_EPOCH}")
def consts():
    e(f"s_mov_b32 {sPLo}, 0x05040100")
    e(f"s_mov_b32 {sPHi}, 0x07060302")
    for k in range(4):
        e(f"s_mov_b32 {sSel[k]}, {0x07060500 + k:#x}")
    e(f"s_mov_b32 {sChk0}, 0x0c0c0400")
    e(f"s_mov_b32 {sChk1}, 0x05040100")
    import struct
    cval = struct.unpack("<I", struct.pack("<f", (128 ** -0.5) * 1.4426950408889634))[0]
    e(f"s_mov_b32 {sC}, {cval:#x}")
def tr_addr():
    e(f"v_lshrrev_b32 {vT0}, 4, {vLane}")
    e(f"v_bfe_u32 {vT1}, {vLane}, 2, 2")
    e(f"v_lshl_add_u32 v234, {vT0}, 3, {vT1}")
    e(f"v_mul_u32_u24 v234, 1280, v234")
    e(f"v_and_b32 v235, 1, {vT0}")
    e(f"v_lshlrev_b32 v235, 3, v235")
    e(f"v_lshl_add_u32 v235, {vT1}, 1, v235")
    e(f"v_and_b32 v236, 1, {vLane}")
    e(f"v_lshl_add_u32 v234, v236, 3, v234")
    e(f"v_add_u32 v234, {LDS_WO}, v234")
    e(f"v_bfe_u32 v236, {vLane}, 1, 1")
    e(f"s_mul_i32 {sT[2]}, {sW}, 10")
    for t in range(5):
        e(f"s_add_u32 {sT[3]}, {sT[2]}, {2*t}")
        e(f"v_add_u32 v237, {sT[3]}, v236")
        e(f"v_xor_b32 v237, v237, v235")
        e(f"v_lshl_add_u32 {vTR[t]}, v237, 4, v234")
    e(f"s_mul_i32 {sT[3]}, {sW}, {O_STRIDE}")
    e(f"s_add_u32 {sT[3]}, {sT[3]}, {LDS_O + 8*O_STRIDE}")
    e(f"v_add_u32 v237, {sT[3]}, {vL4}")
    e("v_mov_b32 v236, 0")
    e("ds_write_b32 v237, v236")

def mix_loads(big, t0=0, per=None):
    d = dma_list()
    per = per or a.dper
    di = 0; after = 0
    for t in range(t0, 16):
        big(t)
        if di >= len(d): after += 1
        for _ in range(per):
            if di < len(d):
                for x in d[di]: e(x)
                di += 1
    assert di == len(d)
    return after
def kv_consts():
    e(f"s_lshr_b32 {sT[0]}, s2, 3")
    e(f"s_lshl_b32 {sT[1]}, {sW}, 2")
    e(f"s_add_u32 {sT[1]}, {sT[1]}, {sT[0]}")
    for q in range(4):
        e(f"s_add_u32 {sKO[q]}, {sT[1]}, {q}")
        e(f"s_and_b32 {sKO[q]}, {sKO[q]}, 31")
        e(f"s_lshl_b32 {sKO[q]}, {sKO[q]}, 12")
    e(f"s_lshl_b32 {sT[2]}, {sB}, 5")
    e(f"s_add_u32 {sT[2]}, {sT[2]}, {sH}")
    e(f"s_lshl_b32 {sT[2]}, {sT[2]}, 21")
    e(f"s_lshl_b32 {sT[3]}, {sJ}, 17")
    e(f"s_add_u32 {sT[2]}, {sT[2]}, {sT[3]}")
    e(f"s_add_u32 {sT[2]}, {sT[2]}, {6144*256}")
    e(f"v_lshl_add_u32 {vKV}, {vLane}, 4, {sT[2]}")
def flags():
    e(f"s_and_b32 {sT[2]}, s2, 127")
    e(f"s_cmp_lt_u32 {sT[2]}, 40")
    e(f"s_cselect_b32 {sIsRed}, 1, 0")
    e(f"s_cmp_lt_u32 {sH}, 27")
    e(f"s_cselect_b32 s12, {640*1728*2}, 0")
    e(f"s_cselect_b32 s13, {1728*640*2}, 0")
    e(f"s_cselect_b32 {sOOB}, 0, 0x80000000")

e("s_cmp_ge_u32 s2, 256")
e("s_cbranch_scc1 L_end")
e("s_load_dwordx16 s[16:31], s[0:1], 0")
e("s_load_dwordx8 s[32:39], s[0:1], 64")
if a.codepf:
    e("s_getpc_b64 s[14:15]")
    lab("L_pcref")
    e("v_lshrrev_b32 v2, 6, v0")
    e("s_lshr_b32 s12, s2, 3")
    e("s_mul_i32 s12, s12, 6")
    e("v_add_u32 v3, s12, v2")
    e("v_and_b32 v3, 15, v3")
    e("v_add_u32 v3, 2, v3")
    e("v_cmp_gt_u32 vcc, 2, v2")
    e(f"s_sub_u32 s14, s14, L_pcref-{NAME}")
    e("s_subb_u32 s15, s15, 0")
    e("v_cndmask_b32 v3, v3, v2, vcc")
    e("v_and_b32 v2, 63, v0")
    e("v_lshlrev_b32 v2, 4, v2")
    e("v_lshl_add_u32 v3, v3, 10, v2")
    e("v_min_u32 v3, CODE_LAST, v3")
    e(f"global_load_dwordx4 {vr(V0+60,4)}, v3, s[14:15]")
if a.prof:
    e("v_mov_b32 v255, 0")
stamp("entry")
if a.dbgspan or a.tfix or a.probe:
    e("s_memrealtime s[100:101]")
e("v_lshrrev_b32 v1, 6, v0")
e("v_and_b32 v0, 63, v0")
e(f"v_readfirstlane_b32 {sW}, v1")
e(f"s_and_b32 {sH}, s2, 7")
e(f"s_lshr_b32 {sT[0]}, s2, 3")
e(f"s_and_b32 {sT[1]}, {sT[0]}, 3")
e(f"s_lshl_b32 {sT[1]}, {sT[1]}, 3")
e(f"s_or_b32 {sH}, {sH}, {sT[1]}")
e(f"s_lshr_b32 {sR}, s2, 5")
if a.rperm: e(f"s_xor_b32 {sR}, {sR}, {a.rperm}")
e(f"s_cmp_ge_u32 {sW}, 4")
e("s_cbranch_scc0 L_A0")
e(f"s_lshr_b32 {sB}, {sR}, 2")
e(f"s_and_b32 {sJ}, {sR}, 3")
kv_consts()
e("s_waitcnt lgkmcnt(0)")
mk_srd("K", 18, 134217728)
for t in range(a.kfirst): k_load(t)
stamp("B first K")
e("s_branch L_B0")
lab("L_A0")
e(f"s_mul_i32 {sT[5]}, {sR}, 80")
e(f"s_mul_i32 {sT[6]}, {sW}, 20")
e(f"s_add_u32 {sT[5]}, {sT[5]}, {sT[6]}")
e(f"s_lshl_b32 {sT[7]}, {sT[5]}, 13")
e(f"s_lshl_b32 {sT[8]}, {sH}, 8")
e(f"s_add_u32 {sT[7]}, {sT[7]}, {sT[8]}")
e(f"v_lshlrev_b32 {vL4}, 2, {vLane}")
e("s_waitcnt lgkmcnt(0)")
mk_srd("WQ", 22, 640 * 4096 * 2)
for t in range(20):
    e(f"buffer_load_dword {v(PQ+t)}, {vL4}, {S_WQ}, {sT[7]} offen{WP}")
    if t < 19: e(f"s_add_u32 {sT[7]}, {sT[7]}, 8192")
def ids2():
    e(f"s_lshl_b32 {sP}, {sH}, 2")
    e(f"s_and_b32 {sJ}, {sR}, 3")
    e(f"s_or_b32 {sP}, {sP}, {sJ}")
    e(f"s_lshr_b32 {sB}, {sR}, 2")
ids2()
flags()
e(f"s_mul_i32 {sT[8]}, {sT[5]}, 3456")
e(f"s_lshl_b32 {sT[9]}, {sH}, 7")
e(f"s_add_u32 {sT[8]}, {sT[8]}, {sT[9]}")
e(f"v_lshlrev_b32 {vT0}, 1, {vLane}")
mk_srd("W1", 28, "s12")
for t in range(0, 20, 2):
    e(f"buffer_load_ushort {v(PH+t)}, {vT0}, {S_W1}, {sT[8]} offen{WP}")
    e(f"buffer_load_ushort {v(PH+t+1)}, {vT0}, {S_W1}, {sT[8]} offen offset:3456{WP}")
    if t < 18: e(f"s_add_u32 {sT[8]}, {sT[8]}, 6912")
e(f"s_lshl_b32 s14, {sT[5]}, 1")
e(f"s_lshl_b32 {sT[0]}, {sW}, 2")
e(f"v_mov_b32 v8, {sT[0]}")
e(f"v_mov_b32 v9, 0")
e(f"ds_write_b32 v8, v9 offset:{LDS_CNT}")
e("s_waitcnt lgkmcnt(0)")
e("s_barrier")
stamp("A P issued")
late_srds()
e("s_mov_b64 s[12:13], s[16:17]")
XR = {0: list(range(16, 26)), 1: list(range(28, 36)) + [26, 27]}
e(f"s_load_dwordx8 s[16:23], s[12:13], s14")
e(f"s_load_dwordx2 s[24:25], s[12:13], s14 offset:32")
e(f"s_load_dwordx8 s[28:35], s[12:13], s14 offset:1280")
e(f"s_load_dwordx2 s[26:27], s[12:13], s14 offset:1312")
kv_consts()
lane_consts()
consts()
tr_addr()
for i in range(6):
    e(f"v_mov_b32 {v(PACC+i)}, 0")
e("s_waitcnt vmcnt(0) lgkmcnt(0)")
stamp("P data")
e(f"s_add_u32 {sNonce}, {sNonce}, 0x01010101")
e(f"v_mov_b32 {vNonce}, {sNonce}")
for t in range(20):
    half = t & 1; idx = t >> 1
    for b in range(2):
        r = XR[b][idx]
        if half == 0: e(f"s_lshl_b32 {sT[b]}, s{r}, 16")
        else: e(f"s_and_b32 {sT[b]}, s{r}, 0xffff0000")
    e(f"v_lshlrev_b32 {vT0}, 16, {v(PQ+t)}")
    e(f"v_and_b32 {vT1}, 0xffff0000, {v(PQ+t)}")
    e(f"v_lshlrev_b32 {v(PH+t)}, 16, {v(PH+t)}")
    e(f"v_fmac_f32 {v(PACC+0)}, {sT[0]}, {vT0}")
    e(f"v_fmac_f32 {v(PACC+1)}, {sT[0]}, {vT1}")
    e(f"v_fmac_f32 {v(PACC+2)}, {sT[1]}, {vT0}")
    e(f"v_fmac_f32 {v(PACC+3)}, {sT[1]}, {vT1}")
    e(f"v_fmac_f32 {v(PACC+4)}, {sT[0]}, {v(PH+t)}")
    e(f"v_fmac_f32 {v(PACC+5)}, {sT[1]}, {v(PH+t)}")
e(f"s_mul_i32 {sT[0]}, {sW}, 1536")
e(f"s_add_u32 {sT[0]}, {sT[0]}, {LDS_P}")
e(f"v_lshl_add_u32 {vT0}, {vLane}, 3, {sT[0]}")
e(f"v_add_u32 {vT1}, {sT[0]}, {vL4}")
e(f"ds_write_b64 {vT0}, {vr(PACC,2)}")
e(f"ds_write_b64 {vT0}, {vr(PACC+2,2)} offset:768")
e(f"ds_write_b32 {vT1}, {v(PACC+4)} offset:512")
e(f"ds_write_b32 {vT1}, {v(PACC+5)} offset:{768+512}")
e(f"s_lshl_b32 {sT[0]}, {sW}, 2")
e(f"v_mov_b32 {vT0}, {sT[0]}")
e("s_waitcnt lgkmcnt(0)")
e(f"v_mov_b32 {vT1}, 1")
e(f"ds_write_b32 {vT0}, {vT1} offset:{LDS_CNT}")
e(f"ds_write_b32 {vT0}, {vNonce} offset:{LDS_NONCE}")
dma_scalars()
e(f"s_cmp_ge_u32 {sW}, 2")
e("s_cbranch_scc1 L_nopub")
e(f"s_mov_b32 {sCnt}, 0")
e(f"v_mov_b32 {vT0}, 0")
lab("L_aspin")
e(f"ds_read_b128 {vr(PACC,4)}, {vT0} offset:{LDS_CNT}")
e(f"s_add_u32 {sCnt}, {sCnt}, 1")
e("s_waitcnt lgkmcnt(0)")
e(f"v_and_b32 {v(PACC)}, {v(PACC)}, {v(PACC+1)}")
e(f"v_and_b32 {v(PACC+2)}, {v(PACC+2)}, {v(PACC+3)}")
e(f"v_and_b32 {v(PACC)}, {v(PACC)}, {v(PACC+2)}")
e(f"s_cmp_gt_u32 {sCnt}, 100000")
e("s_cbranch_scc1 L_aok")
e(f"v_cmp_ne_u32 vcc, 1, {v(PACC)}")
e("s_cbranch_vccnz L_aspin")
lab("L_aok")
PS = V0
e(f"s_mul_i32 {sT[0]}, {sW}, 768")
e(f"s_add_u32 {sT[0]}, {sT[0]}, {LDS_P}")
e(f"v_lshl_add_u32 {vT0}, {vLane}, 4, {sT[0]}")
for w in range(4):
    e(f"ds_read_b128 {vr(PS+4*w,4)}, {vT0} offset:{w*1536}")
e(f"s_lshl_b32 {sT[1]}, {sH}, 3")
e(f"s_add_u32 {sT[1]}, {sT[1]}, {sR}")
e(f"s_lshl_b32 {sT[1]}, {sT[1]}, 1")
e(f"s_add_u32 {sT[1]}, {sT[1]}, {sW}")
e(f"s_mul_i32 {sT[1]}, {sT[1]}, {QH_RB}")
e(f"s_add_u32 {sT[1]}, {sT[1]}, {WS_QH}")
e(f"v_lshl_add_u32 {vT1}, {vLane}, 4, {sT[1]}")
e("s_waitcnt lgkmcnt(0)")
for (n, off) in ((2, 8), (1, 4)):
    for i in range(n):
        for k in range(4):
            e(f"v_add_f32 {v(PS+4*i+k)}, {v(PS+4*i+k)}, {v(PS+4*i+k+off)}")
tag4([v(PS+k) for k in range(4)])
e("s_mov_b32 exec_hi, 0xffff")
e(f"buffer_store_dwordx4 {vr(PS,4)}, {vT1}, {S_WS}, 0 offen sc1")
e("s_mov_b32 exec_hi, -1")
lab("L_nopub")
stamp("published")
nA = mix_loads(k_load)
stamp("A mix issued")
QD = WO0 + 60
QT = 246
e(f"v_mov_b32 {v(QT)}, 0")
e(f"v_mov_b32 {v(QT+1)}, 0")
e(f"v_mov_b32 {v(QT+6)}, 0")
e(f"s_cmp_eq_u32 {sW}, 0")
e("s_cbranch_scc0 L_noq")
e(f"s_lshl_b32 {sT[0]}, {sH}, 4")
e(f"s_add_u32 {sT[0]}, {sT[0]}, {sB}")
e(f"s_mul_i32 {sT[0]}, {sT[0]}, {QH_RB}")
e(f"s_add_u32 {sT[0]}, {sT[0]}, {WS_QH}")
e(f"v_lshrrev_b32 {vT0}, 5, {vLane}")
e(f"v_mul_u32_u24 {vT0}, {2*QH_RB}, {vT0}")
e(f"v_and_b32 {vT1}, 31, {vLane}")
e(f"v_lshl_add_u32 {vT0}, {vT1}, 4, {vT0}")
e(f"v_add_u32 {v(QT)}, {sT[0]}, {vT0}")
e(f"v_bfe_u32 {vT0}, {vLane}, 2, 3")
e(f"v_mul_u32_u24 {vT0}, {2*QH_RB}, {vT0}")
e(f"v_and_b32 {vT1}, 3, {vLane}")
e(f"v_lshl_add_u32 {vT0}, {vT1}, 4, {vT0}")
e(f"s_lshl_b32 {sT[1]}, {sJ}, 6")
e(f"s_add_u32 {sT[1]}, {sT[1]}, {sT[0]}")
e(f"s_add_u32 {sT[1]}, {sT[1]}, 512")
e(f"v_add_u32 {v(QT+1)}, {sT[1]}, {vT0}")
e(f"s_mov_b32 {sCnt}, 0")
stamp("poll addr")
e(f"v_add_u32 {v(QT+6)}, {8*QH_RB}, {v(QT)}")
lab("L_qpoll")
for u in range(4):
    e(f"buffer_load_dwordx4 {vr(QD+4*u,4)}, {v(QT) if u < 2 else v(QT+6)}, {S_WS}, 0 offen offset:{(u&1)*4*QH_RB} {a.qpol}")
e(f"buffer_load_dwordx4 {vr(QD+16,4)}, {v(QT+1)}, {S_WS}, 0 offen {a.qpol}")

e("s_waitcnt vmcnt(0)")

check4(QD, v(QT+2), v(QT+3), "vcc")
for u in range(1, 5):
    check4(QD+4*u, v(QT+2), v(QT+3), f"s[12:13]")
    nop(1)
    e("s_or_b64 vcc, vcc, s[12:13]")
nop(1)
e("s_cbranch_vccz L_qok")
e(f"s_add_u32 {sCnt}, {sCnt}, 1")
e(f"s_cmp_gt_u32 {sCnt}, 20000")
e("s_cbranch_scc1 L_qok")
e("s_sleep 2")
e("s_branch L_qpoll")
lab("L_qok")
for k in range(20): e(f"v_and_b32 {v(QD+k)}, 0xffffff00, {v(QD+k)}")
for u in range(1, 4):
    for k in range(4):
        e(f"v_add_f32 {v(QD+k)}, {v(QD+k)}, {v(QD+4*u+k)}")
nop(2)
e(f"v_permlane32_swap_b32 {v(QD)}, {v(QD+2)}")
e(f"v_permlane32_swap_b32 {v(QD+1)}, {v(QD+3)}")
nop(1)
e(f"v_add_f32 {v(QD)}, {v(QD)}, {v(QD+2)}")
e(f"v_add_f32 {v(QD+1)}, {v(QD+1)}, {v(QD+3)}")
e(f"v_and_b32 {vT0}, 31, {vLane}")
e(f"v_lshrrev_b32 {vT1}, 5, {vLane}")
e(f"v_lshlrev_b32 {vT1}, 2, {vT1}")
e(f"v_lshl_add_u32 {vT0}, {vT0}, 3, {vT1}")
e(f"v_cvt_pk_bf16_f32 {v(QD)}, {v(QD)}, {v(QD+1)}")
e(f"ds_write_b32 {vT0}, {v(QD)} offset:{LDS_Q}")
HD = QD + 16
for ctl in ("row_ror:4", "row_ror:8"):
    for k in range(4):
        e(f"v_add_f32_dpp {v(HD+k)}, {v(HD+k)}, {v(HD+k)} {ctl} row_mask:0xf bank_mask:0xf")
for k in range(4): e(f"v_mov_b32 {v(QT+2+k)}, {v(HD+k)}")
nop(1)
for k in range(4): e(f"v_permlane16_swap_b32 {v(HD+k)}, {v(QT+2+k)}")
nop(1)
for k in range(4): e(f"v_add_f32 {v(HD+k)}, {v(HD+k)}, {v(QT+2+k)}")
for k in range(4): e(f"v_mul_f32 {v(QT+2+k)}, 0xbfb8aa3b, {v(HD+k)}")
for k in range(4): e(f"v_exp_f32 {v(QT+2+k)}, {v(QT+2+k)}")
for k in range(4): e(f"v_add_f32 {v(QT+2+k)}, 1.0, {v(QT+2+k)}")
for k in range(4): e(f"v_rcp_f32 {v(QT+2+k)}, {v(QT+2+k)}")
for k in range(4): e(f"v_mul_f32 {v(HD+k)}, {v(HD+k)}, {v(QT+2+k)}")
e(f"v_cvt_pk_bf16_f32 {v(HD)}, {v(HD)}, {v(HD+1)}")
e(f"v_cvt_pk_bf16_f32 {v(HD+1)}, {v(HD+2)}, {v(HD+3)}")
e(f"v_and_b32 {vT0}, 3, {vLane}")
e(f"v_lshlrev_b32 {vT0}, 3, {vT0}")
e(f"ds_write_b64 {vT0}, {vr(HD,2)} offset:{LDS_H}")
stamp("q ready")
stampval("q retries", sCnt)
lab("L_noq")
e(f"s_waitcnt vmcnt({nA}) lgkmcnt(0)")
e("s_barrier")
stamp("Ra A")
for t in range(8): v_load(t)
e("s_branch L_J2")
lab("L_B0")
e(f"v_lshlrev_b32 {vL4}, 2, {vLane}")
ids2()
flags()
e(f"s_cmp_eq_u32 {sW}, 7")
e(f"s_cselect_b32 {sT[0]}, {sIsRed}, 0")
e(f"s_cmp_eq_u32 {sT[0]}, 0")
e("s_cbranch_scc1 L_nogate_ld")
e(f"s_mul_i32 {sT[0]}, {sB}, 1280")
e(f"v_add_u32 {vT1}, {sT[0]}, {vL4}")
for u in range(5):
    e(f"global_load_dword {v(PG+u)}, {vT1}, s[16:17] offset:{u*256}")
for u in range(5):
    e(f"global_load_dword {v(PG+5+u)}, {vL4}, s[32:33] offset:{u*256}")
lab("L_nogate_ld")
e("s_barrier")
late_srds(skipk=True)
if a.tlbwarm:
    e(f"s_mul_i32 {sT[4]}, {sH}, 163840")
    e(f"s_add_u32 {sT[5]}, {sT[4]}, {163840 - 64}")
    e(f"s_mul_i32 {sT[6]}, {sP}, {16*1280}")
    e(f"v_mov_b32 v8, 0")
    e(f"buffer_load_dword v{V0}, {vKV}, {S_V}, {sKO[0]} offen{KVP}")
    e(f"buffer_load_dword v{V0+1}, v8, {S_WO}, {sT[4]} offen{WP}")
    e(f"buffer_load_dword v{V0+2}, v8, {S_WO}, {sT[5]} offen{WP}")
    e(f"buffer_load_dword v{V0+3}, v8, {S_W2}, {sT[6]} offen{WP}")
    e(f"buffer_load_dword v{V0+4}, v8, {S_WS}, 0 offen offset:{WS_EPOCH+128} sc1")
lane_consts()
dma_scalars()
consts()
tr_addr()
nB = mix_loads(k_load, a.kfirst, a.dperb)
stamp("B mix issued")
for t in range(16): v_load(t)
stamp("B V issued")
e(f"s_cmp_eq_u32 {sW}, 7")
e(f"s_cselect_b32 {sT[0]}, {sIsRed}, 0")
e(f"s_cmp_eq_u32 {sT[0]}, 0")
e("s_cbranch_scc1 L_nogate")
e(f"s_waitcnt vmcnt({50 - a.kfirst + (5 if a.tlbwarm else 0)})")
e(f"v_dot2_f32_bf16 {vT0}, {v(PG)}, {v(PG+5)}, 0")
for u in range(1, 5):
    e(f"v_dot2_f32_bf16 {vT0}, {v(PG+u)}, {v(PG+5+u)}, {vT0}")
nop(3)
for ctl in ("quad_perm:[1,0,3,2]", "quad_perm:[2,3,0,1]", "row_ror:4", "row_ror:8"):
    e(f"v_add_f32_dpp {vT0}, {vT0}, {vT0} {ctl} row_mask:0xf bank_mask:0xf")
    nop(2)
for sw in ("v_permlane16_swap_b32", "v_permlane32_swap_b32"):
    e(f"v_mov_b32 {vT1}, {vT0}")
    nop(2)
    e(f"{sw} {vT0}, {vT1}")
    nop(1)
    e(f"v_add_f32 {vT0}, {vT0}, {vT1}")
e(f"v_mul_f32 {vT0}, 0xbfb8aa3b, {vT0}")
e(f"v_exp_f32 {vT0}, {vT0}")
nop(1)
e(f"v_add_f32 {vT0}, 1.0, {vT0}")
e(f"v_rcp_f32 {vT0}, {vT0}")
e(f"v_mov_b32 {vT1}, {LDS_G}")
nop(1)
e(f"ds_write_b32 {vT1}, {vT0}")
lab("L_nogate")
e(f"s_waitcnt vmcnt({16 + nB}) lgkmcnt(0)")
e("s_barrier")
e(f"v_mov_b32 {vT0}, 0")
e(f"ds_read_b32 {vNonce}, {vT0} offset:{LDS_NONCE}")
stamp("Ra B")
lab("L_J2")
def tr_reads(pairs):
    for (ks, slot) in pairs:
        for t in range(5):
            r = WO0 + (ks*5 + t)*4
            base, off = vTR[t], slot*40960
            if off + 5120 > 65535:
                base, off = v(240+t), 0
            e(f"ds_read_b64_tr_b16 {vr(r,2)}, {base} offset:{off}")
            e(f"ds_read_b64_tr_b16 {vr(r+2,2)}, {base} offset:{off + 5120}")
for t in range(5):
    e(f"v_add_u32 {v(240+t)}, {2*40960}, {vTR[t]}")
tr_reads([(0, 0), (1, 1), (2, 2)])
e(f"v_lshrrev_b32 {vT1}, 4, {vLane}")
e(f"v_mul_u32_u24 {vT1}, 5120, {vT1}")
e(f"v_add_u32 {vT1}, {LDS_WO - LDS_W2}, {vT1}")
for t in range(5):
    e(f"v_sub_u32 {v(240+t)}, {vTR[t]}, {vT1}")
for t in range(5):
    e(f"ds_read_b64_tr_b16 {vr(W20+2*t,2)}, {v(240+t)}")
e(f"v_and_b32 {vT0}, 15, {vLane}")
e(f"v_lshlrev_b32 {vT0}, 4, {vT0}")
e(f"ds_read_b128 {vr(vQ,4)}, {vT0} offset:{LDS_Q}")
e(f"v_lshrrev_b32 {vT1}, 4, {vLane}")
e(f"v_lshlrev_b32 {vT1}, 3, {vT1}")
e(f"ds_read_b64 {vr(vHop,2)}, {vT1} offset:{LDS_H}")
e("s_waitcnt lgkmcnt(0)")
e("s_barrier")
stamp("Rb")
KS = lambda t: K0 + 4*t
S = [KS(t) for t in range(4)]
vM, vLs = "v17", "v18"
def allred(reg, op, tmp, rows=True, quads=False):
    if quads:
        for ctl in ("quad_perm:[1,0,3,2]", "quad_perm:[2,3,0,1]"):
            e(f"{op}_dpp {reg}, {reg}, {reg} {ctl} row_mask:0xf bank_mask:0xf"); nop(2)
    for ctl in ("row_ror:4", "row_ror:8"):
        e(f"{op}_dpp {reg}, {reg}, {reg} {ctl} row_mask:0xf bank_mask:0xf"); nop(2)
    if rows:
        for sw in ("v_permlane16_swap_b32", "v_permlane32_swap_b32"):
            e(f"v_mov_b32 {tmp}, {reg}"); nop(2)
            e(f"{sw} {reg}, {tmp}"); nop(1)
            e(f"{op} {reg}, {reg}, {tmp}")
def qk_softmax():
    cm("QK^T")
    for i in range(4):
        for t in range(16):
            c = "0" if i == 0 else v(KS(t))
            e(f"v_dot2_f32_bf16 {v(KS(t))}, {v(KS(t)+i)}, {v(vQ+i)}, {c}")
    cm("16-lane reduce-scatter of the scores")
    for t in range(8):
        e(f"v_add_f32_dpp {v(KS(t))}, {v(KS(t))}, {v(KS(t))} row_ror:8 row_mask:0xf bank_mask:0x3")
    for t in range(8):
        e(f"v_add_f32_dpp {v(KS(t))}, {v(KS(t+8))}, {v(KS(t+8))} row_ror:8 row_mask:0xf bank_mask:0xc")
    for t in range(4):
        e(f"v_add_f32_dpp {v(KS(t))}, {v(KS(t))}, {v(KS(t))} row_half_mirror row_mask:0xf bank_mask:0x5")
    for t in range(4):
        e(f"v_add_f32_dpp {v(KS(t))}, {v(KS(t+4))}, {v(KS(t+4))} row_half_mirror row_mask:0xf bank_mask:0xa")
    for ctl in ("quad_perm:[1,0,3,2]", "quad_perm:[2,3,0,1]"):
        for t in range(4):
            e(f"v_add_f32_dpp {v(KS(t))}, {v(KS(t))}, {v(KS(t))} {ctl} row_mask:0xf bank_mask:0xf")
    cm("softmax over the wave's 64 keys")
    e(f"v_max3_f32 {vT0}, {v(S[0])}, {v(S[1])}, {v(S[2])}")
    e(f"v_max_f32 {vT0}, {vT0}, {v(S[3])}")
    nop(2)
    allred(vT0, "v_max_f32", vT1)
    e(f"v_mul_f32 {vM}, {sC}, {vT0}")
    for t in range(4):
        e(f"v_fma_f32 {v(S[t])}, {v(S[t])}, {sC}, -{vM}")
    for t in range(4):
        e(f"v_exp_f32 {v(S[t])}, {v(S[t])}")
    nop(1)
    e(f"v_cvt_pk_bf16_f32 {vP01}, {v(S[0])}, {v(S[1])}")
    e(f"v_cvt_pk_bf16_f32 {vP23}, {v(S[2])}, {v(S[3])}")
    e(f"v_add_f32 {vLs}, {v(S[0])}, {v(S[1])}")
    e(f"v_add_f32 {vT0}, {v(S[2])}, {v(S[3])}")
    e(f"v_add_f32 {vLs}, {vLs}, {vT0}")
    nop(2)
    allred(vLs, "v_add_f32", vT1)
    e(f"s_lshl_b32 {sT[0]}, {sW}, 2")
    e(f"v_mov_b32 {vT0}, {sT[0]}")
    e(f"ds_write_b32 {vT0}, {vM} offset:{LDS_M}")
    e(f"ds_write_b32 {vT0}, {vLs} offset:{LDS_L}")
def publish(R0, R4, a0, a4, extra_off, tmpb):
    G0 = tmpb; G4 = tmpb + 4
    for k in range(4):
        e(f"v_mov_b32_dpp {v(G0+k)}, {R0} quad_perm:[{k},{k},{k},{k}] row_mask:0xf bank_mask:0xf")
    for k in range(4):
        e(f"v_mov_b32_dpp {v(G4+k)}, {R4} quad_perm:[{k},{k},{k},{k}] row_mask:0xf bank_mask:0xf")
    tag4([v(G0+k) for k in range(4)])
    tag4([v(G4+k) for k in range(4)])
    e("s_mov_b32 exec_lo, 0x11111111")
    e("s_mov_b32 exec_hi, 0x11111111")
    e(f"buffer_store_dwordx4 {vr(G0,4)}, {a0}, {S_WS}, {extra_off} offen sc1")
    e("s_mov_b32 exec_lo, 0x1111")
    e("s_mov_b32 exec_hi, 0")
    e(f"buffer_store_dwordx4 {vr(G4,4)}, {a4}, {S_WS}, {extra_off} offen sc1")
    e("s_mov_b64 exec, -1")
FD = 32
PUB = 52
sAttOff, sFfnOff = sT[3], sT[2]
def pub_addr():
    e(f"s_mul_i32 {sT[0]}, {sB}, 40")
    e(f"s_mul_i32 {sT[1]}, {sW}, 5")
    e(f"s_add_u32 {sT[0]}, {sT[0]}, {sT[1]}")
    e(f"s_lshl_b32 {sT[0]}, {sT[0]}, 7")
    e(f"s_add_u32 {sT[0]}, {sT[0]}, {sP}")
    e(f"s_lshl_b32 {sT[0]}, {sT[0]}, 6")
    e(f"v_lshrrev_b32 {vT0}, 4, {vLane}")
    e(f"v_lshlrev_b32 {vT0}, 13, {vT0}")
    e(f"v_bfe_u32 {vT1}, {vLane}, 2, 2")
    e(f"v_lshlrev_b32 {vT1}, 4, {vT1}")
    e(f"v_add3_u32 {v(PUB+8)}, {vT0}, {vT1}, {sT[0]}")
    e(f"s_add_u32 {sT[0]}, {sT[0]}, {4*8192}")
    e(f"v_add_u32 {v(PUB+9)}, {sT[0]}, {vT1}")
    e(f"v_add_u32 {v(PUB+10)}, {sOOB}, {v(PUB+8)}")
    e(f"v_add_u32 {v(PUB+11)}, {sOOB}, {v(PUB+9)}")
    e(f"s_mov_b32 {sFfnOff}, {WS_FFN}")
    e(f"s_mov_b32 {sAttOff}, {WS_ATT}")
def ffn_block():
    cm("FFN second projection: 5 tiles, K=16")
    for t in range(5):
        e(f"v_mfma_f32_16x16x16_bf16 {vr(FD+4*t,4)}, {vr(vHop,2)}, {vr(W20+2*t,2)}, 0")
    pub_addr()
    nop(2)
    FR0 = "v19"
    e(f"v_mov_b32 {FR0}, {v(FD)}")
    for g in range(1, 4):
        e(f"v_mov_b32_dpp {FR0}, {v(FD+4*g)} quad_perm:[0,1,2,3] row_mask:{1<<g:#x} bank_mask:0xf")
    nop(2)
    publish(FR0, v(FD+16), v(PUB+10), v(PUB+11), sFfnOff, PUB)
def pv_block(younger, nda=0):
    cm("PV")
    for i in range(8): e(f"v_mov_b32 {v(vAcc+i)}, 0")
    for pr in range(8):
        s0, s1 = 2*pr, 2*pr + 1
        extra = 0
        if nda:
            pos = {1: [12], 2: [11, 13], 3: [10, 12, 14], 4: [10, 11, 13, 14], 5: [9, 10, 12, 13, 14]}[nda]
            extra = sum(1 for p in pos if p >= s1)
        e(f"s_waitcnt vmcnt({15 - s1 + younger + extra})")
        A = V0 + 4*s0; B = V0 + 4*s1
        for i in range(4):
            e(f"v_perm_b32 {v(vPT+2*i)}, {v(B+i)}, {v(A+i)}, {sPLo}")
            e(f"v_perm_b32 {v(vPT+2*i+1)}, {v(B+i)}, {v(A+i)}, {sPHi}")
        P = vP01 if (s0 & 3) == 0 else vP23
        for i in range(8):
            e(f"v_dot2c_f32_bf16_dpp {v(vAcc+i)}, {P}, {v(vPT+i)} row_newbcast:{4*(s0>>2)} row_mask:0xf bank_mask:0xf")
    e(f"s_mul_i32 {sT[0]}, {sW}, {O_STRIDE}")
    e(f"v_and_b32 {vT0}, 15, {vLane}")
    e(f"v_lshrrev_b32 {vT1}, 4, {vLane}")
    for i in range(4): e(f"v_permlane32_swap_b32 {v(vAcc+i)}, {v(vAcc+4+i)}")
    e(f"v_lshlrev_b32 {vT1}, 2, {vT1}")
    for i in range(4): e(f"v_add_f32 {v(vAcc+i)}, {v(vAcc+i)}, {v(vAcc+4+i)}")
    e(f"v_lshl_add_u32 {vT0}, {vT0}, 4, {vT1}")
    e(f"v_add_u32 {vT0}, {sT[0]}, {vT0}")
    e(f"v_permlane16_swap_b32 {v(vAcc)}, {v(vAcc+2)}")
    e(f"v_permlane16_swap_b32 {v(vAcc+1)}, {v(vAcc+3)}")
    nop(1)
    e(f"v_add_f32 {v(vAcc)}, {v(vAcc)}, {v(vAcc+2)}")
    e(f"v_add_f32 {v(vAcc+1)}, {v(vAcc+1)}, {v(vAcc+3)}")
    e(f"v_cvt_pk_bf16_f32 {v(vAcc)}, {v(vAcc)}, {v(vAcc+1)}")
    e(f"ds_write_b32 {vT0}, {v(vAcc)} offset:{LDS_O}")
RF, RM, RA = 80, 88, 96
vRA, vRM, vRW, vRG = "v104", "v105", 106, "v110"
sRedOn = sT[8]
mLo, mHi = "s[20:21]", "s[22:23]"
def red_loads_fm(masked=False):
    if masked: e(f"s_mov_b64 exec, {mLo}")
    e(f"buffer_load_dwordx4 {vr(RF,4)}, {vRA}, {S_WS}, {sFfnOff} offen sc1")
    e(f"buffer_load_dwordx4 {vr(RM,4)}, {vRM}, {S_WS}, 0 offen sc1")
    if masked: e(f"s_mov_b64 exec, {mHi}")
    e(f"buffer_load_dwordx4 {vr(RF+4,4)}, {vRA}, {S_WS}, {sFfnOff} offen offset:1024 sc1")
    e(f"buffer_load_dwordx4 {vr(RM+4,4)}, {vRM}, {S_WS}, 0 offen offset:1024 sc1")
    if masked: e("s_mov_b64 exec, -1")
def red_loads_a(masked=False):
    if masked: e(f"s_mov_b64 exec, {mLo}")
    e(f"buffer_load_dwordx4 {vr(RA,4)}, {vRA}, {S_WS}, {sAttOff} offen sc1")
    if masked: e(f"s_mov_b64 exec, {mHi}")
    e(f"buffer_load_dwordx4 {vr(RA+4,4)}, {vRA}, {S_WS}, {sAttOff} offen offset:1024 sc1")
    if masked: e("s_mov_b64 exec, -1")

def ml_publish(wave, skip):
    e(f"s_cmp_eq_u32 {sW}, {wave}")
    e(f"s_cbranch_scc0 {skip}")
    MLR = 80
    e("v_mov_b32 v96, 0")
    e(f"ds_read_b128 {vr(MLR,4)}, v96 offset:{LDS_M}")
    e(f"ds_read_b128 {vr(MLR+4,4)}, v96 offset:{LDS_M+16}")
    e(f"ds_read_b128 {vr(MLR+8,4)}, v96 offset:{LDS_L}")
    e(f"ds_read_b128 {vr(MLR+12,4)}, v96 offset:{LDS_L+16}")
    e(f"s_lshl_b32 {sT[0]}, {sB}, 7")
    e(f"s_add_u32 {sT[0]}, {sT[0]}, {sP}")
    e(f"s_lshl_b32 {sT[0]}, {sT[0]}, 4")
    e(f"s_add_u32 {sT[0]}, {sT[0]}, {WS_ML}")
    e("s_waitcnt lgkmcnt(0)")
    for r in range(8): e(f"v_sub_f32 {v(MLR+r)}, {v(MLR+r)}, {v(MA)}")
    for r in range(8): e(f"v_exp_f32 {v(MLR+r)}, {v(MLR+r)}")
    e(f"v_mul_f32 v97, {v(MLR)}, {v(MLR+8)}")
    for r in range(1, 8): e(f"v_fmac_f32 v97, {v(MLR+r)}, {v(MLR+8+r)}")
    e(f"v_mov_b32 {v(MLR)}, {v(MA)}")
    e(f"v_mov_b32 {v(MLR+1)}, v97")
    e(f"v_mov_b32 {v(MLR+2)}, {vNonce}")
    e(f"v_mov_b32 {v(MLR+3)}, {vNonce}")
    e(f"v_mov_b32 v96, {sT[0]}")
    e("s_mov_b64 exec, 1")
    e(f"buffer_store_dwordx4 {vr(MLR,4)}, v96, {S_WS}, 0 offen sc1")
    e("s_mov_b64 exec, -1")
    stamp("ML pub")
MA = 16

e(f"s_cmp_ge_u32 {sW}, 4")
e("s_cbranch_scc1 L_B3")
def d3(i):
    hv, u = divmod(i, 5)
    e(f"s_add_u32 m0, {sT[6]}, {LDS_WO + hv*4*5120 + u*1024}")
    e("s_nop 0")
    e(f"buffer_load_dwordx4 {vDM[u]}, {S_WO}, {sT[5] if hv == 0 else sT[7]} offen{WP} lds")
def d3_scalars():
    e(f"s_and_b32 {sT[6]}, {sW}, 3")
    e(f"s_mul_i32 {sT[6]}, {sT[6]}, 5120")
    e(f"s_mul_i32 {sT[5]}, {sH}, 163840")
    e(f"s_add_u32 {sT[5]}, {sT[5]}, {sT[6]}")
    e(f"s_add_u32 {sT[5]}, {sT[5]}, {3*40960}")
    e(f"s_add_u32 {sT[7]}, {sT[5]}, {4*5120}")
if a.r2by == "A":
    d3_scalars()
    for t in range(8, 16): v_load(t)
    for i in range(10): d3(i)
    e("s_waitcnt vmcnt(26)")
else:
    d3_scalars()
    pos = {1: [12], 2: [11, 13], 3: [10, 12, 14], 4: [10, 11, 13, 14], 5: [9, 10, 12, 13, 14], 0: []}[a.nda]
    di = 0
    for t in range(8, 16):
        v_load(t)
        if t in pos:
            d3(di); di += 1
    e(f"s_waitcnt vmcnt({16 + a.nda})")
stamp("A V issued")
qk_softmax()
stamp("A softmax")
ffn_block()
stamp("A ffn pub")
pv_block(12 if a.r2by == "A" else 2, a.nda if a.r2by == "B" else 0)
stamp("A PV done")
if a.prio: e(f"s_setprio {a.prio}")
e("s_branch L_J4")
lab("L_B3")
e("s_waitcnt vmcnt(16)")
qk_softmax()
stamp("B softmax")
pv_block(0)
stamp("B PV done")
def b_stage():
    d3_scalars()
    for i in range(a.nda, 10): d3(i)
    stamp("B r2 issued")
if a.bord == "DF": b_stage()
ffn_block()
stamp("B ffn pub")
if a.bord == "FD": b_stage()
lab("L_J4")
e(f"v_and_b32 {vT0}, 15, {vLane}")
e(f"v_mul_u32_u24 {vT0}, {O_STRIDE}, {vT0}")
e(f"v_lshrrev_b32 {vT1}, 4, {vLane}")
e(f"v_lshl_add_u32 {vT0}, {vT1}, 4, {vT0}")
e(f"v_and_b32 {vT1}, 1, {vT1}")
e(f"v_lshlrev_b32 {vT1}, 4, {vT1}")
e("v_mov_b32 v8, 0")
e("s_waitcnt lgkmcnt(0)")
e("s_barrier")
stamp("O barrier")
OA = 64
DA = 32
for s_ in range(4):
    e(f"ds_read_b128 {vr(OA+4*s_,4)}, {vT0} offset:{LDS_O + s_*64}")
e(f"ds_read_b128 {vr(MA,4)}, v8 offset:{LDS_M}")
e(f"ds_read_b128 {vr(MA+4,4)}, v8 offset:{LDS_M+16}")
e(f"ds_read_b128 {vr(MA+8,4)}, {vT1} offset:{LDS_M}")
if not a.r2last: tr_reads([(3, 0)])
nl = 7 if a.r2last else 17
for s_ in range(4):
    if s_ == 3:
        ml_publish(a.mlwave, "L_noml")
        lab("L_noml")
    if s_ == 3 and a.r2last:
        assert a.r2by == "B" and a.nda == 0
        e(f"s_cmp_ge_u32 {sW}, 4")
        e("s_cbranch_scc0 L_noDwait")
        e(f"s_waitcnt vmcnt({2 if a.bord == 'DF' else 0})")
        lab("L_noDwait")
        e("s_barrier")
        stamp("Rc")
        tr_reads([(3, 0)])
        e("s_waitcnt lgkmcnt(0)")
    if s_ < 3: e(f"s_waitcnt lgkmcnt({min(15, nl - 1 - s_)})")
    for t in range(5):
        c = "0" if s_ == 0 else vr(DA+4*t,4)
        e(f"v_mfma_f32_16x16x32_bf16 {vr(DA+4*t,4)}, {vr(OA+4*s_,4)}, {vr(WO0+(s_*5+t)*4,4)}, {c}")
    if s_ == 1:
        e(f"s_waitcnt lgkmcnt({nl - 7})")
        e(f"v_max3_f32 {v(MA)}, {v(MA)}, {v(MA+1)}, {v(MA+2)}")
        e(f"v_max3_f32 {v(MA+3)}, {v(MA+3)}, {v(MA+4)}, {v(MA+5)}")
        e(f"v_max3_f32 {v(MA)}, {v(MA)}, {v(MA+6)}, {v(MA+7)}")
        e(f"v_max_f32 {v(MA)}, {v(MA)}, {v(MA+3)}")
    if s_ == 2:
        for r in range(4): e(f"v_sub_f32 {v(MA+8+r)}, {v(MA+8+r)}, {v(MA)}")
        for r in range(4): e(f"v_exp_f32 {v(MA+8+r)}, {v(MA+8+r)}")
        if not a.r2last: e("s_waitcnt lgkmcnt(0)")
nop(4)
T = [DA+4*t for t in range(5)]
for t in range(5):
    e(f"v_mul_f32 {v(T[t])}, {v(T[t])}, {v(MA+8)}")
for r in range(1, 4):
    for t in range(5):
        e(f"v_fmac_f32 {v(T[t])}, {v(T[t]+r)}, {v(MA+8+r)}")
e(f"v_mov_b32 {v(T[4]+1)}, {v(T[4])}")
e(f"v_permlane32_swap_b32 {v(T[0])}, {v(T[2])}")
e(f"v_permlane32_swap_b32 {v(T[1])}, {v(T[3])}")
e(f"v_permlane16_swap_b32 {v(T[4])}, {v(T[4]+1)}")
e(f"v_add_f32 {v(T[0])}, {v(T[0])}, {v(T[2])}")
e(f"v_add_f32 {v(T[1])}, {v(T[1])}, {v(T[3])}")
e(f"v_add_f32 {v(T[4])}, {v(T[4])}, {v(T[4]+1)}")
nop(1)
e(f"v_permlane16_swap_b32 {v(T[0])}, {v(T[1])}")
nop(1)
e(f"v_add_f32 {v(T[0])}, {v(T[0])}, {v(T[1])}")
nop(2)
publish(v(T[0]), v(T[4]), v(PUB+8), v(PUB+9), sAttOff, PUB)
stamp("att pub")
e(f"s_cmp_eq_u32 {sIsRed}, 0")
e("s_cbranch_scc1 L_fin")
RA, RF, RM = 64, 68, 72
e(f"s_and_b32 {sT[0]}, s2, 127")
e(f"s_mul_i32 {sT[1]}, {sB}, 40")
e(f"s_add_u32 {sT[1]}, {sT[1]}, {sT[0]}")
e(f"s_lshl_b32 {sT[1]}, {sT[1]}, 13")
e(f"s_lshl_b32 {sT[2]}, {sW}, 10")
e(f"s_add_u32 {sT[1]}, {sT[1]}, {sT[2]}")
e(f"v_lshl_add_u32 v76, {vLane}, 4, {sT[1]}")
e(f"s_lshl_b32 {sT[2]}, {sB}, 11")
e(f"s_lshl_b32 {sT[3]}, {sW}, 8")
e(f"s_add_u32 {sT[2]}, {sT[2]}, {sT[3]}")
e(f"s_add_u32 {sT[2]}, {sT[2]}, {WS_ML}")
e(f"v_lshrrev_b32 {vT0}, 2, {vLane}")
e(f"v_lshl_add_u32 v77, {vT0}, 4, {sT[2]}")
e(f"s_mov_b32 {sT[4]}, {WS_ATT}")
e(f"s_mov_b32 {sT[5]}, {WS_FFN}")
e(f"s_lshl_b32 {sT[6]}, {sW}, 4")
e(f"v_add_u32 {vT0}, {sT[6]}, {vT0}")
e(f"s_movk_i32 {sT[7]}, 108")
e(f"v_cmp_gt_u32 s[14:15], {sT[7]}, {vT0}")
e(f"s_mov_b32 {sCnt}, 0")
lab("L_rpoll1")
e(f"buffer_load_dwordx4 {vr(RF,4)}, v76, {S_WS}, {sT[5]} offen sc1")
e(f"buffer_load_dwordx4 {vr(RM,4)}, v77, {S_WS}, 0 offen sc1")
e(f"buffer_load_dwordx4 {vr(RA,4)}, v76, {S_WS}, {sT[4]} offen sc1")
e("s_waitcnt vmcnt(1)")
check4(RF, vT0, vT1, "vcc")
e(f"v_cmp_ne_u32 s[12:13], {v(RM+2)}, {vNonce}")
nop(1)
e("s_and_b64 vcc, vcc, s[14:15]")
e("s_or_b64 vcc, vcc, s[12:13]")
nop(1)
e("s_cbranch_vccz L_rok1")
e(f"s_add_u32 {sCnt}, {sCnt}, 1")
e(f"s_cmp_gt_u32 {sCnt}, 20000")
e("s_cbranch_scc1 L_rok1")
e("s_waitcnt vmcnt(0)")
e(f"s_sleep {a.sleep}")
e("s_branch L_rpoll1")
lab("L_rok1")
e(f"v_mov_b32 {vT0}, {LDS_G}")
e(f"ds_read_b32 v78, {vT0}")
e(f"v_mov_b32 {vT1}, {v(RM)}")
nop(1)
for ctl in ("row_ror:4", "row_ror:8"):
    e(f"v_max_f32_dpp {vT1}, {vT1}, {vT1} {ctl} row_mask:0xf bank_mask:0xf")
    nop(2)
e(f"v_sub_f32 {v(RM)}, {v(RM)}, {vT1}")
e(f"v_exp_f32 {v(RM)}, {v(RM)}")
nop(1)
e(f"v_mul_f32 {v(RM+1)}, {v(RM+1)}, {v(RM)}")
nop(2)
for ctl in ("row_ror:4", "row_ror:8"):
    e(f"v_add_f32_dpp {v(RM+1)}, {v(RM+1)}, {v(RM+1)} {ctl} row_mask:0xf bank_mask:0xf")
    nop(2)
e(f"v_rcp_f32 {v(RM+1)}, {v(RM+1)}")
e("s_waitcnt lgkmcnt(0)")
e(f"v_mul_f32 {v(RM)}, {v(RM)}, v78")
e(f"v_sub_f32 v78, 1.0, v78")
e(f"v_mul_f32 {v(RM)}, {v(RM)}, {v(RM+1)}")
for k in range(4):
    e(f"v_and_b32 {v(RF+k)}, 0xffffff00, {v(RF+k)}")
for k in range(4):
    e(f"v_cndmask_b32 {v(RF+k)}, 0, {v(RF+k)}, s[14:15]")
for k in range(4):
    e(f"v_mul_f32 {v(RF+k)}, v78, {v(RF+k)}")
e(f"s_mov_b32 {sCnt}, 0")
for _ in range(a.depth - 1):
    e(f"buffer_load_dwordx4 {vr(RA,4)}, v76, {S_WS}, {sT[4]} offen sc1")
lab("L_rpoll2")
e(f"s_waitcnt vmcnt({a.depth - 1})")
check4(RA, vT0, vT1, "s[20:21]")
nop(1)
e("s_or_b64 s[12:13], s[20:21], s[20:21]")
e("s_cbranch_scc0 L_rok2")
e(f"s_add_u32 {sCnt}, {sCnt}, 1")
e(f"s_cmp_gt_u32 {sCnt}, 40000")
e("s_cbranch_scc1 L_rok2")
if a.sleep: e(f"s_sleep {a.sleep}")
if a.mask: e("s_mov_b64 exec, s[20:21]")
e(f"buffer_load_dwordx4 {vr(RA,4)}, v76, {S_WS}, {sT[4]} offen sc1")
if a.mask: e("s_mov_b64 exec, -1")
e("s_branch L_rpoll2")
lab("L_rok2")
stamp("polled")
stampval("final retries", sCnt)
for k in range(4):
    e(f"v_and_b32 {v(84+k)}, 0xffffff00, {v(RA+k)}")
for k in range(4):
    e(f"v_fmac_f32 {v(RF+k)}, {v(RM)}, {v(84+k)}")
nop(1)
for ctl in ("row_ror:4", "row_ror:8"):
    for k in range(4):
        e(f"v_add_f32_dpp {v(RF+k)}, {v(RF+k)}, {v(RF+k)} {ctl} row_mask:0xf bank_mask:0xf")
nop(1)
e(f"v_permlane32_swap_b32 {v(RF)}, {v(RF+2)}")
e(f"v_permlane32_swap_b32 {v(RF+1)}, {v(RF+3)}")
nop(1)
e(f"v_add_f32 {v(RF)}, {v(RF)}, {v(RF+2)}")
e(f"v_add_f32 {v(RF+1)}, {v(RF+1)}, {v(RF+3)}")
nop(1)
e(f"v_permlane16_swap_b32 {v(RF)}, {v(RF+1)}")
e(f"v_and_b32 {vT0}, 3, {vLane}")
e(f"v_lshrrev_b32 {vT1}, 4, {vLane}")
e(f"v_lshl_add_u32 {vT0}, {vT0}, 2, {vT1}")
e(f"s_lshl_b32 {sT[0]}, {sW}, 2")
e(f"v_add_f32 {v(RF)}, {v(RF)}, {v(RF+1)}")
e(f"v_lshl_add_u32 {vT0}, {vT0}, 5, {sT[0]}")
e(f"ds_write_b32 {vT0}, {v(RF)} offset:{LDS_RED}")
e("s_waitcnt lgkmcnt(0)")
e("s_barrier")
stamp("red barrier") if a.probe else None
e(f"s_cmp_eq_u32 {sW}, 0")
e("s_cbranch_scc0 L_fin")
e(f"v_and_b32 {vT0}, 15, {vLane}")
e(f"v_lshlrev_b32 {vT1}, 5, {vT0}")
FS = 80
e(f"ds_read_b128 {vr(FS,4)}, {vT1} offset:{LDS_RED}")
e(f"ds_read_b128 {vr(FS+4,4)}, {vT1} offset:{LDS_RED+16}")
e(f"s_and_b32 {sT[0]}, s2, 127")
e(f"s_lshl_b32 {sT[0]}, {sT[0]}, 5")
e(f"s_mul_i32 {sT[1]}, {sB}, 1280")
e(f"s_add_u32 {sT[0]}, {sT[0]}, {sT[1]}")
e(f"v_lshl_add_u32 {vT0}, {vT0}, 1, {sT[0]}")
e("s_waitcnt lgkmcnt(0)")
for k in range(4): e(f"v_add_f32 {v(FS+k)}, {v(FS+k)}, {v(FS+4+k)}")
e(f"v_add_f32 {v(FS)}, {v(FS)}, {v(FS+1)}")
e(f"v_add_f32 {v(FS+2)}, {v(FS+2)}, {v(FS+3)}")
e(f"v_add_f32 {v(FS)}, {v(FS)}, {v(FS+2)}")
e(f"v_cvt_pk_bf16_f32 {v(FS)}, {v(FS)}, {v(FS)}")
e("s_mov_b32 exec_lo, 0xffff")
e("s_mov_b32 exec_hi, 0")
e(f"buffer_store_short {v(FS)}, {vT0}, {S_OUT}, 0 offen{(' ' + a.outpol) if a.outpol else ''}")
e("s_cmp_eq_u32 s2, 0")
e("s_cbranch_scc0 L_noepoch")
e("s_mov_b32 exec_lo, 1")
e(f"v_mov_b32 {vT0}, {WS_EPOCH}")
e(f"buffer_store_dword {vNonce}, {vT0}, {S_WS}, 0 offen{(' ' + a.outpol) if a.outpol else ''}")
lab("L_noepoch")
e("s_mov_b64 exec, -1")
lab("L_fin")
if a.probe:
    e("s_cmp_eq_u32 s2, 0")
    e("s_cbranch_scc0 L_probe_done")
    e(f"s_cmp_eq_u32 {sW}, {a.probewave}")
    e("s_cbranch_scc0 L_probe_done")
    e("s_mul_i32 s97, s97, 10")
    e("s_add_u32 s96, s100, 2000")
    e("s_add_u32 s96, s96, s97")
    lab("L_probe")
    e("s_memrealtime s[98:99]")
    e("s_waitcnt lgkmcnt(0)")
    e("s_sub_u32 s97, s98, s96")
    e("s_cmp_lt_i32 s97, 0")
    e("s_cbranch_scc1 L_probe")
    lab("L_probe_done")
if a.tfix:
    e("s_cmp_eq_u32 s2, 0")
    e("s_cbranch_scc0 L_tfix_done")
    e(f"s_add_u32 s96, s100, {a.tfix}")
    lab("L_tfix")
    e("s_memrealtime s[98:99]")
    e("s_waitcnt lgkmcnt(0)")
    e("s_sub_u32 s97, s98, s96")
    e("s_cmp_lt_i32 s97, 0")
    e("s_cbranch_scc1 L_tfix")
    lab("L_tfix_done")
stamp("end")
if a.prof:
    e(f"s_lshl_b32 {sT[0]}, s2, 3")
    e(f"s_add_u32 {sT[0]}, {sT[0]}, {sW}")
    e(f"s_lshl_b32 {sT[0]}, {sT[0]}, 7")
    e(f"s_add_u32 {sT[0]}, {sT[0]}, {WS_PROF}")
    e(f"v_add_u32 {vT0}, {sT[0]}, {vL4}")
    e("s_mov_b32 exec_lo, -1")
    e("s_mov_b32 exec_hi, 0")
    e(f"buffer_store_dword v255, {vT0}, {S_WS}, 0 offen")
if a.dbgspan:
    e("s_cmp_ge_u32 s2, 8")
    e("s_cbranch_scc1 L_end")
    e(f"s_cmp_lg_u32 {sW}, 0")
    e("s_cbranch_scc1 L_end")
    e("s_mov_b32 s96, s100")
    e("s_memrealtime s[100:101]")
    e("s_load_dwordx2 s[12:13], s[0:1], 80")
    e("s_waitcnt lgkmcnt(0)")
    e("v_mov_b32 v20, s96")
    e("v_mov_b32 v21, s100")
    e("s_lshl_b32 s96, s2, 3")
    e("v_mov_b32 v22, s96")
    e("s_mov_b32 exec_lo, 1")
    e("s_mov_b32 exec_hi, 0")
    e("global_store_dwordx2 v22, v[20:21], s[12:13]")
lab("L_end")
e("s_endpgm")
lab("L_codeend")


L += ['.section .rodata,"a"', ".p2align 6", f".amdhsa_kernel {NAME}",
      "  .amdhsa_next_free_vgpr 256", "  .amdhsa_next_free_sgpr 102", "  .amdhsa_accum_offset 256",
      "  .amdhsa_group_segment_fixed_size 0", "  .amdhsa_kernarg_size 96", "  .amdhsa_user_sgpr_count 2",
      "  .amdhsa_user_sgpr_kernarg_segment_ptr 1", "  .amdhsa_system_sgpr_workgroup_id_x 1",
      "  .amdhsa_float_denorm_mode_32 3", ".end_amdhsa_kernel"]
text = "\n".join(L) + "\n"
if a.codepf:
    import subprocess, tempfile, os, re
    def subst(t, nbytes):
        chunks = (nbytes + 1023) // 1024
        return (t.replace("CODE_MAGIC", str(0x10000 // chunks + 1)).replace("CODE_CHUNKS", str(0x1000 + chunks) if nbytes == 0 else str(chunks))
                 .replace("CODE_LAST", str(((nbytes - 16) & ~15) if nbytes else 0x12345)))
    with tempfile.TemporaryDirectory() as d:
        src = os.path.join(d, "k.s"); obj = os.path.join(d, "k.o")
        t0 = text.replace("CODE_MAGIC", "0x12345").replace("CODE_CHUNKS", "0x12345").replace("CODE_LAST", "0x12345")
        open(src, "w").write(t0)
        subprocess.run(["clang", "-x", "assembler", "-target", "amdgcn-amd-amdhsa", "-mcpu=gfx950", "-c", src, "-o", obj], check=True)
        nm = subprocess.run(["llvm-objdump", "-d", "--mcpu=gfx950", obj], capture_output=True, text=True).stdout
        last = re.findall(r"// ([0-9A-F]{12}):", nm)[-1]
        nbytes = int(last, 16) + 4
    chunks = (nbytes + 1023) // 1024
    magic = 0x10000 // chunks + 1
    assert all(((i * magic) >> 16) == i // chunks for i in range(32))
    text = text.replace("CODE_MAGIC", f"{magic:#x}").replace("CODE_LAST", f"{(nbytes - 16) & ~15:#x}")
    text = text.replace("CODE_CHUNKS", str(chunks))
open(a.o, "w").write(text)
if a.prof:
    open(a.o + ".stamps", "w").write("\n".join(PROF_NAMES) + "\n")
```
